```python
import torch

def _softmax(x, axis=-1):
    return torch.softmax(x, dim=axis)

def _gelu(x):
    return torch.nn.functional.gelu(x, approximate='tanh')

def _silu(x):
    return torch.nn.functional.silu(x)

def _sigmoid(x):
    return torch.sigmoid(x)

def _layernorm(x, axis=-1, eps=1e-05):
    m = x.mean(dim=axis, keepdim=True)
    v = x.var(dim=axis, keepdim=True, unbiased=False)
    return (x - m) / torch.sqrt(v + eps)

def _scatter_add(tgt, idx, src, axis=0):
    return tgt.clone().index_add_(axis, idx, src)

def _segment_sum(src, seg, n):
    out = torch.zeros((n,) + src.shape[1:], dtype=src.dtype)
    return out.index_add_(0, seg, src)

def _pad(x, pw):
    flat = tuple((v for pair in reversed(pw) for v in pair))
    return torch.nn.functional.pad(x, flat)
kernel_name = 'adaLN_cond__sliding_local_dilated__glu_gated_glu__prompt'

def setup_inputs():

    _w = lambda a: (lambda t: t.to(torch.bfloat16) if t.is_floating_point() else t)(torch.as_tensor(a))

    def _A_setup():
        B, S, D = (1, 2048, 512)
        return {'x': _w((lambda *s: torch.randn(*s, dtype=torch.bfloat16) * 0.05)(B, S, D)), 'wqkv': _w((lambda *s: torch.randn(*s, dtype=torch.bfloat16) * 0.05)(D, 3 * D)), 'wo': _w((lambda *s: torch.randn(*s, dtype=torch.bfloat16) * 0.05)(D, D))}
    _A_in = _A_setup()

    def _B_setup():
        B, S, D, F = (1, 2048, 512, 1792)
        return {'x': _w((lambda *s: torch.randn(*s, dtype=torch.bfloat16) * 0.05)(B, S, D)), 'w_gate': _w((lambda *s: torch.randn(*s, dtype=torch.bfloat16) * 0.05)(D, F)), 'w_up': _w((lambda *s: torch.randn(*s, dtype=torch.bfloat16) * 0.05)(D, F)), 'w_down': _w((lambda *s: torch.randn(*s, dtype=torch.bfloat16) * 0.05)(F, D))}
    _B_in = _B_setup()
    return {'A_x': _A_in['x'], 'A_wqkv': _A_in['wqkv'], 'A_wo': _A_in['wo'], 'B_x': _B_in['x'], 'B_w_gate': _B_in['w_gate'], 'B_w_up': _B_in['w_up'], 'B_w_down': _B_in['w_down'], 'c': _w((lambda *s: torch.randn(*s, dtype=torch.bfloat16) * 0.1)(1, 512) * 8.0), 'w_mod': _w((lambda *s: torch.randn(*s, dtype=torch.bfloat16) * 0.1)(512, 6 * 512) * 512 ** (-0.5) * 8.0)}

def reference(A_x, A_wqkv, A_wo, B_x, B_w_gate, B_w_up, B_w_down, c, w_mod):

    def _A_ref(x, wqkv, wo):
        B, S, D = x.shape
        H = 32
        Dh = D // H
        W, dil = (8, 2)
        qkv = (lambda x, *d: x.permute(*d))((x @ wqkv).reshape(B, S, 3, H, Dh), 2, 0, 3, 1, 4)
        q, k, v = (qkv[0], qkv[1], qkv[2])
        scale = Dh ** (-0.5)
        pos = torch.arange(S)
        off = torch.arange(W) * dil
        idx = pos[:, None] - off[None, :]
        mask = idx >= 0
        idx_c = torch.where(mask, idx, 0).reshape(-1)
        kg = k[:, :, idx_c, :].reshape(B, H, S, W, Dh)
        vg = v[:, :, idx_c, :].reshape(B, H, S, W, Dh)
        logits = torch.einsum('bhsd,bhswd->bhsw', q, kg) * scale
        logits = torch.where(mask[None, None, :, :], logits, -1000000000.0)
        attn = _softmax(logits, axis=-1)
        o = torch.einsum('bhsw,bhswd->bhsd', attn, vg)
        return (lambda x, *d: x.permute(*d))(o, 0, 2, 1, 3).reshape(B, S, D) @ wo

    def _B_ref(x, w_gate, w_up, w_down):
        g = torch.einsum('bsd,df->bsf', x, w_gate)
        u = torch.einsum('bsd,df->bsf', x, w_up)
        h = _sigmoid(g) * u
        return torch.einsum('bsf,fd->bsd', h, w_down)
    x = A_x
    mod = (_silu(c) @ w_mod).reshape(c.shape[0], 6, 1, -1)
    sa, ca, ga, sb, cb, gb = (mod[:, 0].clone(), mod[:, 1].clone(), mod[:, 2].clone(), mod[:, 3].clone(), mod[:, 4].clone(), mod[:, 5].clone())
    h = _layernorm(x, axis=-1) * (1 + ca) + sa
    x = x + ga * _A_ref(h, A_wqkv, A_wo)
    h = _layernorm(x, axis=-1) * (1 + cb) + sb
    x = x + gb * _B_ref(h, B_w_gate, B_w_up, B_w_down)
    return x
```

```python
class Asm:
    def __init__(self):
        self.lines = []
        self._lab = 0
    def __call__(self, s):
        for l in s.strip("\n").split("\n"):
            self.lines.append("    " + l.strip())
    def raw(self, s):
        self.lines.append(s)
    def label(self, name):
        self.lines.append(name + ":")
    def newlabel(self, p="L"):
        self._lab += 1
        return "%s_%d" % (p, self._lab)
    def comment(self, s):
        self.lines.append("    ; " + s)
    def text(self):
        return "\n".join(self.lines) + "\n"

def vr(a, n=1, p="v"):
    return "%s%d" % (p, a) if n == 1 else "%s[%d:%d]" % (p, a, a + n - 1)
def ar(a, n=1): return vr(a, n, "a")
def sr(a, n=1): return vr(a, n, "s")

def kernel_header(name):
    return """.text
.globl %s
.p2align 8
.type %s,@function
%s:
""" % (name, name, name)

def kernel_desc(name, vgpr=256, sgpr=102, accum=256, extra=""):
    return """.section .rodata,"a"
.p2align 6
.amdhsa_kernel %s
  .amdhsa_next_free_vgpr %d
  .amdhsa_next_free_sgpr %d
  .amdhsa_accum_offset %d
  .amdhsa_group_segment_fixed_size 0
  .amdhsa_kernarg_size 96
  .amdhsa_user_sgpr_count 2
  .amdhsa_user_sgpr_kernarg_segment_ptr 1
  .amdhsa_system_sgpr_workgroup_id_x 1
%s.end_amdhsa_kernel
""" % (name, vgpr, sgpr, accum, extra)
```

```python
class VM:
    def __init__(self):
        self.q = []
    def issue(self, tag):
        self.q.append(tag)
    def wait(self, pred):
        idx = -1
        for i, t in enumerate(self.q):
            if pred(t): idx = i
        if idx < 0:
            return None
        n = len(self.q) - 1 - idx
        self.q = self.q[idx + 1:]
        assert n <= 63, "vmcnt overflow %d" % n
        return "s_waitcnt vmcnt(%d)" % n
    def drain(self):
        self.q = []
        return "s_waitcnt vmcnt(0)"
```

```python
import sys
from asmlib import Asm, kernel_header, kernel_desc
from sched import VM

NAME = "adaLN_cond__sliding_local_dilated__glu_gated_glu__prompt_kernel"

WS_MODP = 0x0
WS_FLAG = 0x10000
F1, F2A, F2B, F3, FHI = 0, 512, 1024, 1536, 3584
WS_F0B  = 0x18000
WS_GRA  = 0x20000
GRH = 24576
WS_GRB = 0x2C000
WS_OF   = 0x100000
WS_ST   = 0x300000
WS_X2   = 0x380000
WS_H2F  = 0x400000
WS_HHF  = 0x600000
WS_TS   = 0xE00000
WS_DBG  = 0x1000000
WS_SIZE = 0x10000000

LDS_H    = 0
LDS_RING = 81920
LDS_STAT = 155648
LDS_MV   = 158208
LDS_VEC  = 162304
LDS_MODE = 163328
LDS_TOTAL = 163840
NSLOT = 39
SLOT_OFF = 20

S_X, S_WQKV, S_WO, S_WG, S_WU, S_WD, S_C, S_WMOD, S_OUT, S_DBG, S_WS = 4, 6, 8, 12, 14, 16, 18, 20, 22, 24, 26
SRD_A, SRD_WS, SRD_X, SRD_B = 28, 32, 36, 40
S_WAVE, S_V, S_R, S_RB, S_CB, S_NONCE, S_XCC, S_MODE = 44, 45, 46, 47, 48, 49, 50, 51
S_T = 52
S_EX = 80
S_TS = 96

L2E = 0x3fb8aa3b

class Ctx:
    def __init__(self, **kw):
        self.opt = dict(stop=None, stamps=False, force_global=False)
        self.opt.update(kw)
        self.a = Asm()
        self.bars = {"C": [], "L": []}
        self.nstamp = {"C": 0, "L": 0}
    def bar(self, who, name):
        self.bars[who].append(name)
        self.a("s_barrier")
    def stamp(self, who, name=""):
        if not self.opt["stamps"]: return
        if self.opt.get("minstamps") and name not in ("entry", "end"): return
        if self.opt.get("p3stamps") and who == "C" and name in ("xdot", "lnbar", "ln1", "h0", "pre", "qkv", "attn", "f1", "p2mm", "f2a_st", "f2a", "f2b_st"): return
        a = self.a
        n = self.nstamp[who]; self.nstamp[who] += 1
        if n >= 32: return
        a("s_memrealtime s[96:97]")
        a("s_memtime s[100:101]")
        a("s_waitcnt lgkmcnt(0)")
        a("v_writelane_b32 v255, s96, %d" % n)
        a("v_writelane_b32 v255, s100, %d" % (n + 32))

def capture(c, fn):
    n0 = len(c.a.lines)
    fn()
    out = [l.strip() for l in c.a.lines[n0:] if l.strip()]
    del c.a.lines[n0:]
    return out

def srd(a, dst, ptr, size):
    a("s_mov_b32 s%d, s%d" % (dst, ptr))
    a("s_and_b32 s%d, s%d, 0xffff" % (dst + 1, ptr + 1))
    a("s_mov_b32 s%d, 0x%x" % (dst + 2, size))
    a("s_mov_b32 s%d, 0x20000" % (dst + 3))

def set_exec(a, nl):
    if nl >= 64: a("s_mov_b64 exec, -1"); return
    if nl <= 31: a("s_mov_b64 exec, 0x%x" % ((1 << nl) - 1)); return
    a("s_mov_b32 exec_lo, -1")
    a("s_mov_b32 exec_hi, 0x%x" % ((1 << (nl - 32)) - 1))

def bsrd(r): return "s[%d:%d]" % (r, r + 3)
def v4(r): return "v[%d:%d]" % (r, r + 3)
def v2(r): return "v[%d:%d]" % (r, r + 1)

def entry(c):
    a = c.a
    if c.opt.get("permute"):
        a("s_cmp_ge_u32 s2, 256\ns_cbranch_scc1 L_end\ns_lshr_b32 s3, s2, 3\ns_and_b32 s3, s3, %d\ns_xor_b32 s2, s2, s3" % c.opt["permute"])
    a("""
    s_cmp_ge_u32 s2, 256
    s_cbranch_scc1 L_end
    s_load_dwordx4 s[4:7], s[0:1], 0
    s_load_dwordx2 s[8:9], s[0:1], 16
    s_load_dwordx8 s[12:19], s[0:1], 32
    s_load_dwordx8 s[20:27], s[0:1], 64
    s_getreg_b32 s50, hwreg(HW_REG_XCC_ID, 0, 4)
    v_and_b32 v1, 63, v0
    v_lshrrev_b32 v2, 6, v0
    s_and_b32 s45, s2, 7
    s_lshr_b32 s46, s2, 3
    v_readfirstlane_b32 s44, v2
    s_lshr_b32 s47, s46, 3
    s_and_b32 s48, s46, 7
    v_mov_b32 v255, 0
    """)
    if c.opt.get("early_code"):
        a("s_getpc_b64 s[56:57]")
        a.label("L_pc0")
        a("s_sub_u32 s56, s56, L_pc0-%s" % NAME)
        a("s_subb_u32 s57, s57, 0")
        a("s_mul_i32 s53, s46, (L_code_end-%s+128*32-1)/(128*32)" % NAME)
        a("v_add_u32 v3, s53, v1")
        a("v_lshlrev_b32 v3, 7, v3")
        a("s_mov_b32 s58, L_code_end-%s-4" % NAME)
        a("v_min_u32 v3, s58, v3")
        a("v_cmp_le_u32 vcc, 448, v0")
        a("v_cmp_gt_u32 s[80:81], 20, v1")
        a("s_nop 1")
        a("s_and_b64 vcc, vcc, s[80:81]")
        a("s_and_saveexec_b64 s[82:83], vcc")
        a("s_cbranch_execz L_noec")
        a("global_load_dword v4, v3, s[56:57]")
        a.label("L_noec")
        a("s_mov_b64 exec, s[82:83]")
    a("s_waitcnt lgkmcnt(0)")
    if c.opt.get("rolex"): a("s_xor_b32 s48, s48, %d" % c.opt["rolex"])
    srd(a, SRD_WS, S_WS, WS_SIZE)
    c.stamp("C", "entry"); c.nstamp["L"] = c.nstamp["C"]
    if c.opt["stamps"]:
        a("s_getreg_b32 s96, hwreg(HW_REG_HW_ID)")
        a("v_writelane_b32 v255, s96, 63")
    a("s_cmp_ge_u32 s44, 4")
    a("s_cbranch_scc1 L_loader")

def poll(c, vaddr_setup, nl, cmpreg, tag, label, src="ws", vtmp=250, sleep=0):
    a = c.a
    a("s_mov_b32 s%d, 0" % (S_T + 20))
    if nl < 64: set_exec(a, nl)
    a.label(label)
    a("buffer_load_dword v%d, v%d, %s, 0 offen sc1" % (vtmp, vtmp + 1, bsrd(SRD_WS)))
    a("s_add_u32 s%d, s%d, 1" % (S_T + 20, S_T + 20))
    a("s_waitcnt vmcnt(0)")
    a("v_cmp_ne_u32 vcc, s%d, v%d" % (cmpreg, vtmp))
    a("s_cmp_gt_u32 s%d, 0x100000" % (S_T + 20))
    a("s_cbranch_scc1 %s_out" % label)
    if sleep:
        a("s_cbranch_vccz %s_out" % label)
        a("s_sleep %d" % sleep)
        a("s_branch %s" % label)
    else:
        a("s_cbranch_vccnz %s" % label)
    a.label(label + "_out")
    if nl < 64: a("s_mov_b64 exec, -1")

X0 = 2
def c_x_loads(c):
    a = c.a
    srd(a, SRD_X, S_X, 2048 * 1024)
    a("""
    s_lshl_b32 s52, s45, 8
    s_lshl_b32 s53, s47, 6
    s_add_u32 s52, s52, s53
    s_sub_u32 s52, s52, 16
    v_lshrrev_b32 v200, 3, v1
    v_add_u32 v200, s52, v200
    v_and_b32 v201, 7, v1
    v_lshlrev_b32 v201, 4, v201
    s_lshl_b32 s53, s44, 8
    v_add_u32 v201, s53, v201
    """)
    for b in range(10):
        a("v_add_u32 v202, %d, v200" % (8 * b))
        if b < 2: a("v_max_i32 v202, 0, v202")
        a("v_lshl_add_u32 v%d, v202, 10, v201" % (203 + b % 2))
        for l in range(2):
            r = X0 + 80 + 4 * (2 * b + l)
            a("buffer_load_dwordx4 %s, v%d, %s, 0 offen offset:%d" % (v4(r), 203 + b % 2, bsrd(SRD_X), 128 * l))

def c_ln1(c):
    a = c.a
    SUM, SQ = 162, 163
    ONE = 182
    a("v_mov_b32 v%d, 0x3f803f80" % ONE)
    for b in range(10):
        a("s_waitcnt vmcnt(%d)" % (18 - 2 * b))
        first = True
        for l in range(2):
            for d in range(4):
                r = X0 + 80 + 4 * (2 * b + l) + d
                if first:
                    a("v_dot2_f32_bf16 v%d, v%d, v%d, 0" % (SUM + 2 * b, r, ONE))
                    a("v_dot2_f32_bf16 v%d, v%d, v%d, 0" % (SQ + 2 * b, r, r))
                    first = False
                else:
                    a("v_dot2c_f32_bf16 v%d, v%d, v%d" % (SUM + 2 * b, r, ONE))
                    a("v_dot2c_f32_bf16 v%d, v%d, v%d" % (SQ + 2 * b, r, r))
    c.stamp("C", "xdot")
    if c.opt.get("touch5"): touch_later(c, 207, 254)
    a("s_nop 2")
    if c.opt.get("align"): a(".p2align 3")
    for pat in ("quad_perm:[1,0,3,2]", "quad_perm:[2,3,0,1]", "row_half_mirror"):
        for i in range(20):
            a("v_add_f32_dpp v%d, v%d, v%d %s row_mask:0xf bank_mask:0xf" % (162 + i, 162 + i, 162 + i, pat))
    a("""
    v_lshrrev_b32 v200, 3, v1
    v_lshlrev_b32 v200, 5, v200
    s_lshl_b32 s53, s44, 3
    s_add_u32 s53, s53, %d
    v_add_u32 v201, s53, v200
    v_add_u32 v208, %d, v200
    """ % (LDS_STAT, LDS_STAT))
    for b in range(10):
        a("ds_write_b64 v201, %s offset:%d" % (v2(162 + 2 * b), 256 * b))
    a("s_waitcnt lgkmcnt(0)")
    c.bar("C", "LN")
    c.stamp("C", "lnbar")
    if c.opt.get("fused"): h0_issue(c)
    T = 224
    a("s_mov_b32 s54, 0x3b000000")
    a("s_mov_b32 s55, 0x3727c5ac")
    def rd(b):
        t = T + 8 * (b % 2)
        a("ds_read_b128 %s, v208 offset:%d" % (v4(t), 256 * b))
        a("ds_read_b128 %s, v208 offset:%d" % (v4(t + 4), 256 * b + 16))
    rd(0)
    for b in range(10):
        if b < 9: rd(b + 1)
        t = T + 8 * (b % 2)
        a("s_waitcnt lgkmcnt(%d)" % (2 if b < 9 else 0))
        a("v_pk_add_f32 %s, %s, %s" % (v2(t), v2(t), v2(t + 2)))
        a("v_pk_add_f32 %s, %s, %s" % (v2(t + 4), v2(t + 4), v2(t + 6)))
        a("v_pk_add_f32 %s, %s, %s" % (v2(t), v2(t), v2(t + 4)))
        a("v_mul_f32 v%d, s54, v%d" % (t, t))
        a("v_mul_f32 v%d, s54, v%d" % (t + 1, t + 1))
        a("v_fma_f32 v%d, -v%d, v%d, v%d" % (t + 1, t, t, t + 1))
        a("v_max_f32 v%d, 0, v%d" % (t + 1, t + 1))
        a("v_add_f32 v%d, s55, v%d" % (t + 1, t + 1))
        a("v_rsq_f32 v%d, v%d" % (162 + 2 * b, t + 1))
        a("s_nop 0")
        a("v_mul_f32 v%d, v%d, v%d" % (t, t, 162 + 2 * b))
        a("v_sub_f32 v%d, 0, v%d" % (163 + 2 * b, t))
    a("s_mov_b32 s56, 0xffff0000")
    if c.opt.get("fused"): return
    a(".p2align 3")
    for i in range(80):
        if i == c.opt.get("h0at", 40):
            h0_issue(c)
            if c.opt.get("t0early"): c.bar("C", "T0")
            a(".p2align 3")
        b = i // 8
        src = X0 + 80 + i
        a("v_lshlrev_b32 v%d, 16, v%d" % (X0 + 2 * i, src))
        a("v_and_b32 v%d, s56, v%d" % (X0 + 2 * i + 1, src))
        p = v2(162 + 2 * b)
        a("v_pk_fma_f32 %s, %s, %s, %s op_sel:[0,0,1] op_sel_hi:[1,0,1]" % (v2(X0 + 2 * i), v2(X0 + 2 * i), p, p))
    if c.opt.get("h0at", 40) >= 80:
        h0_issue(c)
        if c.opt.get("t0early"): c.bar("C", "T0")

def h0_issue(c, label=None):
    a = c.a
    A = bsrd(SRD_WS)
    if label is None:
        a("""
        s_lshl_b32 s53, s44, 10
        s_add_u32 s53, s53, %d
        v_lshlrev_b32 v200, 4, v1
        v_add_u32 v200, s53, v200
        s_movk_i32 s57, 0x1000
        s_movk_i32 s58, 0x6000
        s_movk_i32 s59, 0x7000
        v_mov_b32 v201, 132
        s_mov_b32 s72, 0
        """ % WS_GRA)
    else:
        a.label(label)
    a("global_load_dword v202, v201, s[24:25] sc1")
    a("buffer_load_dwordx4 v[184:187], v200, %s, 0 offen sc1" % A)
    a("buffer_load_dwordx4 v[188:191], v200, %s, s58 offen sc1" % A)
    a("buffer_load_dwordx4 v[192:195], v200, %s, s57 offen sc1" % A)
    a("buffer_load_dwordx4 v[196:199], v200, %s, s59 offen sc1" % A)

def touch_later(c, vreg, dst):
    a = c.a
    a("""
    s_lshl_b32 s52, s2, 2
    s_add_u32 s52, s52, s44
    s_mov_b32 s54, s8
    s_mov_b32 s55, s9
    s_cmp_ge_u32 s52, 64
    s_cselect_b32 s54, s12, s54
    s_cselect_b32 s55, s13, s55
    s_cselect_b32 s53, 64, 0
    s_cmp_ge_u32 s52, 288
    s_cselect_b32 s54, s14, s54
    s_cselect_b32 s55, s15, s55
    s_cselect_b32 s53, 288, s53
    s_cmp_ge_u32 s52, 512
    s_cselect_b32 s54, s16, s54
    s_cselect_b32 s55, s17, s55
    s_cselect_b32 s53, 512, s53
    s_sub_u32 s53, s52, s53
    s_lshl_b32 s53, s53, 13
    v_lshlrev_b32 v207, 7, v1
    v_add_u32 v207, s53, v207
    s_cmp_ge_u32 s52, 736
    """)
    lab = a.newlabel("L_tch")
    a("s_cbranch_scc1 %s" % lab)
    a("global_load_dword v254, v207, s[54:55]")
    a.label(lab)

def c_pretouch(c):
    a = c.a
    W = bsrd(SRD_WS)
    a("""
    s_lshl_b32 s52, s45, 3
    s_lshl_b32 s53, s47, 1
    s_add_u32 s52, s52, s53
    s_lshl_b32 s52, s52, 15
    s_lshl_b32 s53, s48, 12
    s_add_u32 s52, s52, s53
    v_and_b32 v205, 31, v1
    v_lshlrev_b32 v205, 7, v205
    v_lshrrev_b32 v206, 5, v1
    v_lshl_add_u32 v205, v206, 15, v205
    s_cmp_eq_u32 s44, 1
    s_cselect_b32 s53, 0x%x, 0x%x
    """ % (WS_H2F, 0))
    a("s_cmp_eq_u32 s44, 0")
    a("s_cselect_b32 s53, 0x%x, s53" % WS_OF)
    a("s_add_u32 s52, s52, s53")
    a("s_cmp_ge_u32 s44, 2")
    a("s_cbranch_scc1 L_pt_a")
    a("buffer_load_dword v254, v205, %s, s52 offen sc1" % W)
    a.label("L_pt_a")
    a("s_cmp_lg_u32 s44, 2")
    a("s_cbranch_scc1 L_pt_b")
    a("""
    s_lshl_b32 s52, s45, 2
    s_add_u32 s52, s52, s47
    s_lshl_b32 s52, s52, 13
    s_lshl_b32 s53, s48, 10
    s_add_u32 s52, s52, s53
    s_add_u32 s52, s52, %d
    s_lshl_b32 s53, s45, 12
    s_add_u32 s53, s53, %d
    v_lshlrev_b32 v205, 7, v1
    v_add_u32 v206, s52, v205
    v_add_u32 v205, s53, v205
    v_cmp_gt_u32 vcc, 8, v1
    s_nop 1
    v_cndmask_b32 v205, v205, v206, vcc
    """ % (WS_ST, WS_FLAG - 8 * 128))
    set_exec(a, 40)
    a("buffer_load_dword v254, v205, %s, 0 offen sc1" % W)
    a("s_mov_b64 exec, -1")
    a.label("L_pt_b")
    if not c.opt.get("hhlocal"): return
    a("""
    s_cmp_ge_u32 s46, 28
    s_cbranch_scc1 L_pt_c
    s_cmp_ge_u32 s46, 14
    s_cselect_b32 s66, 1, 0
    s_mul_i32 s53, s66, 14
    s_sub_u32 s67, s46, s53
    s_lshl_b32 s52, s45, 3
    s_lshl_b32 s53, s66, 2
    s_add_u32 s52, s52, s53
    s_add_u32 s52, s52, s44
    s_mul_i32 s52, s52, 112
    s_lshl_b32 s53, s67, 3
    s_add_u32 s52, s52, s53
    s_lshl_b32 s52, s52, 10
    s_add_u32 s52, s52, %d
    v_lshlrev_b32 v205, 7, v1
    """ % WS_HHF)
    a("buffer_load_dword v254, v205, %s, s52 offen sc1" % W)
    a.label("L_pt_c")

def c_h0_modulate(c):
    a = c.a
    A = bsrd(SRD_WS)
    a("s_branch L_h0_chk")
    h0_issue(c, "L_h0")
    a.label("L_h0_chk")
    a("s_add_u32 s72, s72, 1")
    a("s_waitcnt vmcnt(0)")
    a("""
    v_xor_b32 v203, v185, v202
    v_xor_b32 v204, v187, v202
    v_xor_b32 v205, v189, v202
    v_xor_b32 v206, v191, v202
    v_or3_b32 v203, v203, v204, v205
    v_xor_b32 v204, v193, v202
    v_xor_b32 v205, v195, v202
    v_or3_b32 v203, v203, v206, v204
    v_xor_b32 v204, v197, v202
    v_xor_b32 v206, v199, v202
    v_or3_b32 v203, v203, v205, v204
    v_or_b32 v203, v203, v206
    v_readfirstlane_b32 s49, v202
    v_cmp_ne_u32 vcc, 0, v203
    s_cmp_gt_u32 s72, 0x100000
    s_cbranch_scc1 L_h0_out
    s_cmp_eq_u32 s49, 0
    s_cbranch_scc1 L_h0_again
    s_cbranch_vccz L_h0_out
    """)
    a.label("L_h0_again")
    a("s_sleep 4")
    a("s_branch L_h0")
    a.label("L_h0_out")
    if (c.opt.get("stage", 1) or c.opt.get("tw0") or c.opt.get("wstage") or c.opt.get("ringsplit", 6) < 6) and not c.opt.get("t0early"): c.bar("C", "T0")
    c.stamp("C", "h0")
    if c.opt.get("pretouch", False): c_pretouch(c)
    if c.opt.get("touch2"): touch_later(c, 207, 254)
    a("""
    v_add_f32 v184, v184, v188
    v_add_f32 v185, v186, v190
    v_add_f32 v188, v192, v196
    v_add_f32 v189, v194, v198
    """)
    a("""
    s_lshl_b32 s53, s44, 10
    s_add_u32 s53, s53, %d
    v_lshlrev_b32 v201, 3, v1
    v_add_u32 v201, s53, v201
    v_and_b32 v202, 7, v1
    v_lshlrev_b32 v203, 5, v202
    v_add_u32 v203, s53, v203
    """ % LDS_MV)
    a("""
    v_lshrrev_b32 v204, 2, v202
    s_lshl_b32 s54, s44, 2
    v_add_u32 v204, s54, v204
    v_mul_u32_u24 v204, 5120, v204
    v_and_b32 v205, 3, v202
    v_lshl_add_u32 v204, v205, 8, v204
    v_lshrrev_b32 v205, 3, v1
    v_xor_b32 v205, v205, v202
    v_lshl_add_u32 v204, v205, 4, v204
    """)
    if LDS_H: a("v_add_u32 v204, %d, v204" % LDS_H)
    a("""
    v_cvt_pk_bf16_f32 v186, v184, v185
    v_cvt_pk_bf16_f32 v190, v188, v189
    v_lshlrev_b32 v184, 16, v186
    v_and_b32 v185, s56, v186
    v_lshlrev_b32 v188, 16, v190
    v_and_b32 v189, s56, v190
    v_add_f32 v188, 1.0, v188
    v_add_f32 v189, 1.0, v189
    v_cvt_pk_bf16_f32 v190, v188, v189
    s_nop 0
    v_lshlrev_b32 v188, 16, v190
    v_and_b32 v189, s56, v190
    s_nop 0
    ds_write_b64 v201, v[188:189]
    ds_write_b64 v201, v[184:185] offset:512
    s_waitcnt lgkmcnt(0)
    """)
    G, SA = 208, 224
    for l in range(2):
        a("ds_read_b128 %s, v203 offset:%d" % (v4(G + 8 * l), 256 * l))
        a("ds_read_b128 %s, v203 offset:%d" % (v4(G + 8 * l + 4), 256 * l + 16))
        a("ds_read_b128 %s, v203 offset:%d" % (v4(SA + 8 * l), 512 + 256 * l))
        a("ds_read_b128 %s, v203 offset:%d" % (v4(SA + 8 * l + 4), 512 + 256 * l + 16))
    a(".p2align 3")
    for l in range(2):
        if l == 0: a("s_waitcnt lgkmcnt(4)\ns_nop 0")
        for b in range(10):
            i0 = 4 * (2 * b + l)
            if c.opt.get("fused"):
                P = 10 + 4 * (b % 2)
                pr = v2(162 + 2 * b)
                for d in range(4):
                    src = X0 + 80 + i0 + d
                    a("v_lshlrev_b32 v%d, 16, v%d" % (2 + 2 * d, src))
                    a("v_and_b32 v%d, s56, v%d" % (3 + 2 * d, src))
                for d in range(4):
                    a("v_pk_fma_f32 %s, %s, %s, %s op_sel:[0,0,1] op_sel_hi:[1,0,1]" % (v2(2 + 2 * d), v2(2 + 2 * d), pr, pr))
                for d in range(4):
                    a("v_pk_fma_f32 %s, %s, %s, %s" % (v2(2 + 2 * d), v2(2 + 2 * d), v2(G + 8 * l + 2 * d), v2(SA + 8 * l + 2 * d)))
                for d in range(4):
                    a("v_cvt_pk_bf16_f32 v%d, v%d, v%d" % (P + d, 2 + 2 * d, 3 + 2 * d))
            else:
                P = 184 + 4 * (b % 2)
                for d in range(4):
                    x = X0 + 2 * (i0 + d)
                    a("v_pk_fma_f32 %s, %s, %s, %s" % (v2(x), v2(x), v2(G + 8 * l + 2 * d), v2(SA + 8 * l + 2 * d)))
                for d in range(4):
                    x = X0 + 2 * (i0 + d)
                    a("v_cvt_pk_bf16_f32 v%d, v%d, v%d" % (P + d, x, x + 1))
            a("ds_write_b128 v204, %s offset:%d" % (v4(P), l * 10240 + (b >> 1) * 1024 + (b & 1) * 128))
        if l == 0: a("s_waitcnt lgkmcnt(10)\ns_nop 0")
    a("v_mov_b32 v200, %d" % (LDS_MODE + 4))
    a("v_mov_b32 v201, s49")
    a("ds_write_b32 v200, v201")
    a("s_waitcnt lgkmcnt(0)")
    c.bar("C", "PRE")

QA, KA, VA = 0, 16, 36
ACC0 = 4
HF = (64, 84)
WF = (104, 116)
def qacc(tt): return ACC0 + 4 * (tt - 1)
def kacc(tt): return ACC0 + 16 + 4 * tt
def vacc(tt): return ACC0 + 36 + 4 * tt
def c_qkv(c):
    a = c.a
    a("""
    v_lshrrev_b32 v200, 4, v1
    v_and_b32 v201, 15, v1
    v_xor_b32 v202, v201, v200
    v_lshlrev_b32 v202, 4, v202
    v_lshl_add_u32 v130, v200, 8, v202
    v_add_u32 v203, 4, v200
    v_xor_b32 v202, v201, v203
    v_lshlrev_b32 v202, 4, v202
    v_lshl_add_u32 v131, v200, 8, v202
    """)
    a("v_add_u32 v132, %d, v130" % (12 * 5120))
    a("v_add_u32 v133, %d, v131" % (12 * 5120))
    a("""
    v_lshrrev_b32 v202, 2, v201
    v_and_b32 v203, 3, v1
    v_mul_u32_u24 v204, 3072, v200
    v_lshl_add_u32 v204, v202, 7, v204
    v_and_b32 v205, 1, v203
    v_lshl_add_u32 v204, v205, 3, v204
    v_lshrrev_b32 v205, 1, v203
    s_lshl_b32 s53, s44, 1
    v_add_u32 v205, s53, v205
    v_lshrrev_b32 v206, 1, v202
    v_lshlrev_b32 v206, 1, v206
    v_and_b32 v207, 1, v200
    v_lshl_add_u32 v206, v207, 2, v206
    v_xor_b32 v205, v205, v206
    v_lshl_add_u32 v134, v205, 4, v204
    v_add_u32 v134, %d, v134
    """ % LDS_RING)
    def reads(s):
        st = s % 2
        base = (130 + st) if s < 12 else (132 + st)
        off0 = (s if s < 12 else s - 12) * 5120
        hr = ["ds_read_b128 %s, v%d offset:%d" % (v4(HF[st] + 4 * tt), base, off0 + tt * 1024) for tt in range(5)]
        wr = ["ds_read_b64_tr_b16 %s, v134 offset:%d" % (v2(WF[st] + 4 * m + 2 * h), (s % 6) * 12288 + m * 1024 + 512 * h) for m in range(3) for h in range(2)]
        return hr, wr
    def mfmas(s):
        st = s % 2
        first = (s == 0)
        L = []
        def mf(acc, A, B): L.append("v_mfma_f32_16x16x32_bf16 %s, %s, %s, %s" % (v4(acc), v4(A), v4(B), "0" if first else v4(acc)))
        for tt in range(5):
            h = HF[st] + 4 * tt
            mf(kacc(tt), WF[st] + 4, h)
            mf(vacc(tt), h, WF[st] + 8)
            if tt >= 1: mf(qacc(tt), WF[st], h)
        return L
    hoist = []
    if c.opt.get("hoist", 1):
        hoist = capture(c, lambda: (c_attn_consts(c), c_xres_loads(c), c_p2_pre(c), c_p2_setup(c)))
    hr, wr = reads(0)
    for x in wr + hr: a(x)
    for s in range(16):
        a("s_waitcnt lgkmcnt(0)")
        if s % 2 == 0:
            if c.opt.get("gstamps"): c.stamp("C", "gb%d" % s)
            c.bar("C", "G%d" % (s // 2))
            if c.opt.get("gstamps"): c.stamp("C", "ga%d" % s)
        if s == 15:
            c.bar("C", "GEND")
        nxt = []
        if s < 15:
            hr, wr = reads(s + 1)
            nxt = wr[2:6] + hr[0:2] + wr[0:2] + hr[2:5]
        ms = mfmas(s)
        k = 0
        per = c.opt.get("qkv_per", 2)
        if s == 15:
            a("v_mov_b32 v200, %d" % LDS_MODE) if False else None
        for i, m in enumerate(ms):
            a(m)
            for x in nxt[k:k + per]: a(x)
            k += per
            if 1 <= s <= 13 and i >= 6:
                for _ in range(2 if i < 10 else 1):
                    if hoist: a(hoist.pop(0))
            if s == 15 and i == 0:
                a("v_mov_b32 v158, %d" % LDS_MODE)
                a("ds_read_b32 v159, v158")
    assert not hoist, len(hoist)

def c_attn_consts(c):
    a = c.a
    a("""
    v_and_b32 v136, 15, v1
    v_lshrrev_b32 v137, 4, v1
    v_and_b32 v138, 1, v136
    v_lshlrev_b32 v139, 2, v137
    v_add_u32 v139, v139, v138
    v_cmp_eq_u32 s[80:81], 1, v138
    v_cmp_le_u32 s[82:83], v139, v136
    v_add_u32 v140, 2, v139
    v_cmp_le_u32 s[84:85], v140, v136
    v_mov_b32 v141, 0x0c0c0100
    v_mov_b32 v142, 0x01000c0c
    v_mov_b32 v143, 0x0c0c0302
    v_mov_b32 v144, 0x03020c0c
    v_mov_b32 v145, 0x0c0c0c0c
    v_cndmask_b32 v141, v141, v142, s[80:81]
    v_cndmask_b32 v143, v143, v144, s[80:81]
    v_cndmask_b32 v146, v141, v145, s[82:83]
    v_cndmask_b32 v147, v143, v145, s[84:85]
    v_cndmask_b32 v148, v145, v141, s[82:83]
    v_cndmask_b32 v149, v145, v143, s[84:85]
    """)
    a("""
    s_or_b32 s53, s45, s47
    s_cmp_eq_u32 s53, 0
    s_cselect_b32 s54, 0xf149f2ca, 0
    v_mov_b32 v150, s54
    v_mov_b32 v151, 0
    v_cndmask_b32 v152, v150, v151, s[82:83]
    v_cndmask_b32 v153, v150, v151, s[84:85]
    """)
    a("""
    v_and_b32 v154, 1, v137
    v_lshlrev_b32 v154, 9, v154
    v_lshl_add_u32 v154, v136, 4, v154
    v_lshrrev_b32 v155, 1, v137
    v_lshl_add_u32 v154, v155, 3, v154
    s_lshl_b32 s53, s45, 3
    s_lshl_b32 s54, s47, 1
    s_add_u32 s53, s53, s54
    s_lshl_b32 s53, s53, 5
    s_lshl_b32 s54, s48, 2
    s_add_u32 s53, s53, s54
    s_add_u32 s53, s53, s44
    s_lshl_b32 s53, s53, 10
    s_add_u32 s60, s53, %d
    s_add_u32 s61, s60, 32768
    """ % WS_OF)

def c_attention(c, mode):
    a = c.a
    sc = " sc1" if mode == "G" else ""
    QB, KB, VB = 64, 72, 84
    def qb(tt): return QB + 2 * (tt - 1)
    def kb(tt): return KB + 2 * tt
    def vb(tt): return VB + 2 * tt
    if c.opt.get("align"): a(".p2align 3")
    for tt in range(5):
        for (acc, dst) in ((kacc(tt), kb(tt)), (vacc(tt), vb(tt))):
            a("v_cvt_pk_bf16_f32 v%d, v%d, v%d" % (dst, acc, acc + 1))
            a("v_cvt_pk_bf16_f32 v%d, v%d, v%d" % (dst + 1, acc + 2, acc + 3))
        if tt >= 1:
            a("v_cvt_pk_bf16_f32 v%d, v%d, v%d" % (qb(tt), qacc(tt), qacc(tt) + 1))
            a("v_cvt_pk_bf16_f32 v%d, v%d, v%d" % (qb(tt) + 1, qacc(tt) + 2, qacc(tt) + 3))
    if c.opt.get("astamps"): c.stamp("C", "a_cvt")
    a("s_nop 1")
    SC, SP = 4, 20
    for j in range(4):
        tt = j + 1
        a("v_mfma_f32_16x16x16_bf16 %s, %s, %s, 0" % (v4(SC + 4 * j), v2(kb(tt)), v2(qb(tt))))
        a("v_mfma_f32_16x16x16_bf16 %s, %s, %s, 0" % (v4(SP + 4 * j), v2(kb(tt - 1)), v2(qb(tt))))
    a("s_nop 4")
    if c.opt.get("align"): a(".p2align 3")
    A_, B_, M_, T_ = 36, 40, 44, 48
    U_ = 52
    for j in range(4):
        sc_, sp_ = SC + 4 * j, SP + 4 * j
        a("v_cndmask_b32 v%d, v%d, v%d, s[80:81]" % (A_ + j, sc_, sc_ + 1))
        a("v_cndmask_b32 v%d, v%d, v%d, s[80:81]" % (T_ + j, sp_, sp_ + 1))
        a("v_cndmask_b32 v%d, v%d, v%d, s[80:81]" % (B_ + j, sc_ + 2, sc_ + 3))
        a("v_cndmask_b32 v%d, v%d, v%d, s[80:81]" % (U_ + j, sp_ + 2, sp_ + 3))
    for j in range(4):
        a("v_cndmask_b32 v%d, v%d, v%d, s[82:83]" % (A_ + j, T_ + j, A_ + j))
        a("v_cndmask_b32 v%d, v%d, v%d, s[84:85]" % (B_ + j, U_ + j, B_ + j))
    a("v_add_f32 v%d, v%d, v152" % (A_, A_))
    a("v_add_f32 v%d, v%d, v153" % (B_, B_))
    for j in range(4): a("v_max_f32 v%d, v%d, v%d" % (M_ + j, A_ + j, B_ + j))
    def xreduce(op, R):
        for sw in ("v_permlane16_swap_b32", "v_permlane32_swap_b32"):
            for j in range(4): a("v_mov_b32 v%d, v%d" % (T_ + j, R + j))
            a("s_nop 0")
            for j in range(4): a("%s v%d, v%d" % (sw, R + j, T_ + j))
            a("s_nop 0")
            for j in range(4): a("%s v%d, v%d, v%d" % (op, R + j, R + j, T_ + j))
    if c.opt.get("astamps"): c.stamp("C", "a_sel")
    xreduce("v_max_f32", M_)
    a("s_mov_b32 s54, 0x3eb8aa3b")
    for j in range(4): a("v_mul_f32 v%d, s54, v%d" % (M_ + j, M_ + j))
    for j in range(4):
        a("v_fma_f32 v%d, v%d, s54, -v%d" % (A_ + j, A_ + j, M_ + j))
        a("v_fma_f32 v%d, v%d, s54, -v%d" % (B_ + j, B_ + j, M_ + j))
    for j in range(4):
        a("v_exp_f32 v%d, v%d" % (A_ + j, A_ + j))
        a("v_exp_f32 v%d, v%d" % (B_ + j, B_ + j))
    a("s_nop 0")
    for j in range(4): a("v_add_f32 v%d, v%d, v%d" % (M_ + j, A_ + j, B_ + j))
    xreduce("v_add_f32", M_)
    for j in range(4): a("v_rcp_f32 v%d, v%d" % (M_ + j, M_ + j))
    a("s_nop 0")
    for j in range(4):
        a("v_mul_f32 v%d, v%d, v%d" % (A_ + j, A_ + j, M_ + j))
        a("v_mul_f32 v%d, v%d, v%d" % (B_ + j, B_ + j, M_ + j))
    for j in range(4): a("v_cvt_pk_bf16_f32 v%d, v%d, v%d" % (T_ + j, A_ + j, B_ + j))
    if c.opt.get("astamps"): c.stamp("C", "a_soft")
    PB = 4
    a("s_nop 0")
    for j in range(4):
        for k in range(4):
            a("v_perm_b32 v%d, v%d, v%d, v%d" % (PB + 4 * j + k, T_ + j, T_ + j, 146 + k))
    a("s_nop 1")
    OA = 20
    for j in range(4):
        tt = j + 1
        a("v_mfma_f32_16x16x32_bf16 %s, %s, %s, 0" % (v4(OA + 4 * j), v4(vb(tt - 1)), v4(PB + 4 * j)))
    a("s_nop 4")
    for j in range(4):
        o = OA + 4 * j
        a("v_cvt_pk_bf16_f32 v%d, v%d, v%d" % (36 + 2 * j, o, o + 1))
        a("v_cvt_pk_bf16_f32 v%d, v%d, v%d" % (37 + 2 * j, o + 2, o + 3))
    if c.opt.get("astamps"): c.stamp("C", "a_pv")
    for j in range(4):
        a("buffer_store_dwordx2 %s, v154, %s, s%d offen offset:%d%s" % (v2(36 + 2 * j), bsrd(SRD_WS), 60 + (j >> 1), 256 * (j & 1), " sc1" if c.opt.get("o_sc1") else sc))
    if (c.opt.get("trig", 1) and not c.opt.get("stage", 1)): c.bar("C", "T1")
    a("s_waitcnt vmcnt(0)")
    if c.opt.get("astamps"): c.stamp("C", "a_drain")
    flag_store(c, F1, mode)
    if (c.opt.get("trig", 1) and not c.opt.get("stage", 1)): c.bar("C", "T2")

def flag_store(c, off, mode, cond=None):
    a = c.a
    sc = " sc1" if mode == "G" else ""
    a("""
    s_lshl_b32 s53, s45, 12
    s_lshl_b32 s54, s46, 4
    s_add_u32 s53, s53, s54
    s_lshl_b32 s54, s44, 2
    s_add_u32 s53, s53, s54
    s_add_u32 s53, s53, %d
    v_mov_b32 v252, s49
    v_mov_b32 v253, 0
    s_mov_b64 exec, 1
    """ % (WS_FLAG + off))
    a("buffer_store_dword v252, v253, %s, s53 offen%s" % (bsrd(SRD_WS), sc))
    a("s_mov_b64 exec, -1")

XR = 240
X2P = 244
def c_xres_loads(c):
    a = c.a
    a("""
    s_lshl_b32 s52, s45, 8
    s_lshl_b32 s53, s47, 6
    s_add_u32 s52, s52, s53
    s_lshr_b32 s53, s44, 1
    s_lshl_b32 s53, s53, 5
    s_add_u32 s52, s52, s53
    v_and_b32 v236, 31, v1
    v_add_u32 v236, s52, v236
    v_lshlrev_b32 v236, 10, v236
    v_lshrrev_b32 v237, 5, v1
    v_lshl_add_u32 v236, v237, 3, v236
    s_lshl_b32 s52, s48, 7
    s_and_b32 s53, s44, 1
    s_lshl_b32 s53, s53, 6
    s_add_u32 s52, s52, s53
    v_add_u32 v236, s52, v236
    """)
    for j in range(4):
        a("buffer_load_dwordx2 %s, v236, %s, 0 offen offset:%d" % (v2(XR + 2 * j), bsrd(SRD_X), 16 * j))

def c_p2_pre(c):
    a = c.a
    a("""
    s_and_b32 s57, s44, 1
    s_lshr_b32 s58, s44, 1
    s_lshl_b32 s52, s45, 12
    s_lshl_b32 s53, s47, 7
    s_add_u32 s52, s52, s53
    s_lshl_b32 s53, s57, 6
    s_add_u32 s52, s52, s53
    s_add_u32 s52, s52, %d
    v_lshlrev_b32 v157, 2, v1
    v_add_u32 v157, s52, v157
    """ % (WS_FLAG + F1))

def c_p2_setup(c):
    a = c.a
    a("""
    s_lshl_b32 s52, s45, 3
    s_lshl_b32 s53, s47, 1
    s_add_u32 s52, s52, s53
    s_add_u32 s59, s52, s58
    s_lshl_b32 s52, s59, 5
    s_lshl_b32 s53, s57, 4
    s_add_u32 s52, s52, s53
    s_lshl_b32 s52, s52, 10
    s_add_u32 s62, s52, %d
    v_lshlrev_b32 v0, 4, v1
    """ % WS_OF)
    a("""
    v_lshrrev_b32 v200, 4, v1
    v_and_b32 v201, 1, v200
    v_lshrrev_b32 v200, 1, v200
    v_and_b32 v202, 15, v1
    v_lshrrev_b32 v203, 2, v202
    v_and_b32 v204, 3, v1
    v_lshl_add_u32 v205, v200, 2, v203
    v_lshlrev_b32 v205, 7, v205
    v_and_b32 v206, 1, v204
    v_lshl_add_u32 v205, v206, 3, v205
    v_lshrrev_b32 v206, 1, v204
    v_lshl_add_u32 v206, v201, 1, v206
    v_lshrrev_b32 v207, 1, v203
    v_lshlrev_b32 v207, 2, v207
    v_xor_b32 v208, v206, v207
    v_lshl_add_u32 v232, v208, 4, v205
    v_add_u32 v206, 4, v206
    v_xor_b32 v208, v206, v207
    v_lshl_add_u32 v233, v208, 4, v205
    s_lshl_b32 s53, s57, 15
    v_add_u32 v234, s53, v232
    v_add_u32 v235, s53, v233
    """)

def c_p2(c, mode):
    a = c.a
    sc = " sc1" if mode == "G" else ""
    W = bsrd(SRD_WS)
    OB = 64
    AC = (4, 20)
    FR = 128
    a("v_mov_b32 v253, v157")
    poll(c, None, 16, S_NONCE, None, "L_f1_" + mode, vtmp=252)
    c.stamp("C", "f1")
    NB0 = c.opt.get("p2nb", 4)
    def oload(i):
        if i and i % 4 == 0: a("s_add_u32 s62, s62, 4096")
        a("buffer_load_dwordx4 %s, v0, %s, s62 offen offset:%d sc1" % (v4(OB + 4 * i), W, (i % 4) * 1024))
        vm.issue(("O", i))
    vm = VM()
    for i in range(NB0): oload(i)
    c.bar("C", "P2A")
    seq = [(i, cb2) for i in range(16) for cb2 in range(2)]
    D, NS = 4, 6
    def reads(n):
        i, cb2 = seq[n]
        fr = FR + 4 * (n % NS)
        a("ds_read_b64_tr_b16 %s, v%d offset:%d" % (v2(fr), 234 + cb2, i * 2048))
        a("ds_read_b64_tr_b16 %s, v%d offset:%d" % (v2(fr + 2), 234 + cb2, i * 2048 + 1024))
    for n in range(D): reads(n)
    for n in range(32):
        i, cb2 = seq[n]
        if n == c.opt.get("t3at", 24) and (c.opt.get("trig", 1) and not c.opt.get("stage", 1)): c.bar("C", "T3")
        if n + D < 32: reads(n + D)
        if cb2 == 0:
            if i + NB0 < 16: oload(i + NB0)
            w = vm.wait(lambda t: t[1] <= i)
            if w: a(w)
        a("s_waitcnt lgkmcnt(%d)" % (2 * min(D, 31 - n)))
        fr = FR + 4 * (n % NS)
        acc = AC[cb2]
        a("v_mfma_f32_32x32x16_bf16 v[%d:%d], %s, %s, %s" % (acc, acc + 15, v4(fr), v4(OB + 4 * i), "0" if i == 0 else "v[%d:%d]" % (acc, acc + 15)))
    c.stamp("C", "p2mm")
    R = 36
    def p2_vec():
        a("""
        v_lshrrev_b32 v200, 5, v1
        v_lshlrev_b32 v200, 4, v200
        s_lshl_b32 s53, s57, 7
        s_add_u32 s53, s53, %d
        v_add_u32 v238, s53, v200
        """ % LDS_VEC)
        GA, G2, SB = 64, 80, 96
        for j in range(4): a("ds_read_b128 %s, v238 offset:%d" % (v4(GA + 4 * j), 32 * j))
        for j in range(4): a("ds_read_b128 %s, v238 offset:%d" % (v4(G2 + 4 * j), 256 + 32 * j))
        for j in range(4): a("ds_read_b128 %s, v238 offset:%d" % (v4(SB + 4 * j), 512 + 32 * j))
        a("s_mov_b32 s56, 0xffff0000")
        XF = 112
        for d in range(8):
            a("v_lshlrev_b32 v%d, 16, v%d" % (XF + 2 * d, XR + d))
            a("v_and_b32 v%d, s56, v%d" % (XF + 2 * d + 1, XR + d))

    GA, G2, SB = 64, 80, 96
    XF = 112
    if c.opt.get("p2hoist", 1):
        kreduce(c, AC, 16 * 4096, "P2C", None, pre=p2_vec)
    else:
        kreduce(c, AC, 16 * 4096, "P2C", None)
        p2_vec()
    if not c.opt.get("p2hoist", 1): a("s_waitcnt lgkmcnt(8)")
    for d in range(8):
        a("v_pk_fma_f32 %s, %s, %s, %s" % (v2(R + 2 * d), v2(R + 2 * d), v2(GA + 2 * d), v2(XF + 2 * d)))
    a("v_pk_mul_f32 v[4:5], %s, %s" % (v2(R), v2(R)))
    a("v_pk_add_f32 v[6:7], %s, %s" % (v2(R), v2(R + 2)))
    for d in range(1, 8): a("v_pk_fma_f32 v[4:5], %s, %s, v[4:5]" % (v2(R + 2 * d), v2(R + 2 * d)))
    for d in range(2, 8): a("v_pk_add_f32 v[6:7], v[6:7], %s" % v2(R + 2 * d))
    a("""
    v_add_f32 v8, v6, v7
    v_add_f32 v9, v4, v5
    v_mov_b32 v10, v8
    v_mov_b32 v11, v9
    s_nop 1
    v_permlane32_swap_b32 v8, v10
    v_permlane32_swap_b32 v9, v11
    s_nop 0
    v_add_f32 v8, v8, v10
    v_add_f32 v9, v9, v11
    """)
    a("""
    s_lshl_b32 s52, s45, 2
    s_add_u32 s52, s52, s47
    s_lshl_b32 s52, s52, 14
    s_add_u32 s60, s52, %d
    s_lshl_b32 s53, s58, 9
    s_add_u32 s60, s60, s53
    s_lshl_b32 s52, s48, 1
    s_add_u32 s52, s52, s57
    s_lshl_b32 s52, s52, 10
    s_add_u32 s61, s60, s52
    v_and_b32 v12, 31, v1
    v_lshlrev_b32 v12, 4, v12
    v_mov_b32 v10, s49
    v_mov_b32 v11, s49
    s_mov_b32 exec_hi, 0
    """ % WS_ST)
    a("buffer_store_dwordx4 v[8:11], v12, %s, s61 offen%s" % (W, sc))
    a("s_mov_b64 exec, -1")
    if (c.opt.get("trig", 1) and not c.opt.get("stage", 1)): c.bar("C", "T4")
    for d in range(8): a("v_cvt_pk_bf16_f32 v%d, v%d, v%d" % (X2P + d, R + 2 * d, R + 2 * d + 1))
    c.stamp("C", "f2a_st")
    a("""
    v_lshrrev_b32 v13, 5, v1
    v_lshl_add_u32 v12, v13, 13, v12
    s_add_u32 s61, s60, 4096
    s_mov_b32 s72, 0
    """)
    SG = 160
    lab = "L_f2a_" + mode
    a.label(lab)
    for j in range(8):
        a("buffer_load_dwordx4 %s, v12, %s, s%d offen offset:%d sc1" % (v4(SG + 4 * j), W, 60 + (j >> 2), 1024 * (j & 3)))
    a("s_add_u32 s72, s72, 1")
    a("s_waitcnt vmcnt(0)")
    for j in range(8): a("v_xor_b32 v%d, s49, v%d" % (14 + j, SG + 4 * j + 2))
    a("""
    v_or3_b32 v14, v14, v15, v16
    v_or3_b32 v17, v17, v18, v19
    v_or3_b32 v14, v14, v20, v21
    v_or_b32 v14, v14, v17
    v_cmp_ne_u32 vcc, 0, v14
    s_cmp_gt_u32 s72, 0x100000
    s_cbranch_scc1 %s_out
    s_cbranch_vccnz %s
    """ % (lab, lab))
    a.label(lab + "_out")
    if (c.opt.get("trig", 1) and not c.opt.get("stage", 1)): c.bar("C", "T5")
    c.stamp("C", "f2a")
    a("s_waitcnt lgkmcnt(0)")
    for j in range(8):
        a("v_mov_b32 v%d, v%d" % (14 + 2 * j, SG + 4 * j)) if False else None
    for j in range(1, 8):
        a("v_pk_add_f32 %s, %s, %s" % (v2(SG), v2(SG), v2(SG + 4 * j)))
    a("v_mov_b32 v14, v%d" % SG)
    a("v_mov_b32 v15, v%d" % (SG + 1))
    a("""
    v_mov_b32 v16, v14
    v_mov_b32 v17, v15
    s_nop 1
    v_permlane32_swap_b32 v14, v16
    v_permlane32_swap_b32 v15, v17
    s_nop 0
    v_add_f32 v14, v14, v16
    v_add_f32 v15, v15, v17
    s_mov_b32 s54, 0x3b000000
    s_mov_b32 s55, 0x3727c5ac
    v_mul_f32 v14, s54, v14
    v_mul_f32 v15, s54, v15
    v_fma_f32 v15, -v14, v14, v15
    v_max_f32 v15, 0, v15
    v_add_f32 v15, s55, v15
    v_rsq_f32 v16, v15
    s_nop 0
    v_mul_f32 v14, v14, v16
    v_sub_f32 v17, 0, v14
    """)
    for d in range(8):
        a("v_pk_fma_f32 %s, %s, v[16:17], v[16:17] op_sel:[0,0,1] op_sel_hi:[1,0,1]" % (v2(R + 2 * d), v2(R + 2 * d)))
    for d in range(8):
        a("v_pk_fma_f32 %s, %s, %s, %s" % (v2(R + 2 * d), v2(R + 2 * d), v2(G2 + 2 * d), v2(SB + 2 * d)))
    for d in range(8): a("v_cvt_pk_bf16_f32 v%d, v%d, v%d" % (20 + d, R + 2 * d, R + 2 * d + 1))
    a("""
    s_lshl_b32 s52, s59, 5
    s_lshl_b32 s53, s48, 2
    s_add_u32 s52, s52, s53
    s_lshl_b32 s53, s57, 1
    s_add_u32 s52, s52, s53
    s_lshl_b32 s52, s52, 10
    s_add_u32 s52, s52, %d
    """ % WS_H2F)
    sch = " sc1" if c.opt.get("h2_sc1") else sc
    a("buffer_store_dwordx4 v[20:23], v0, %s, s52 offen%s" % (W, sch))
    a("buffer_store_dwordx4 v[24:27], v0, %s, s52 offen offset:1024%s" % (W, sch))
    if (c.opt.get("trig", 1) and not c.opt.get("stage", 1)): c.bar("C", "T6")
    a("s_lshl_b32 s53, s57, 11")
    a("v_add_u32 v115, s53, v232")
    a("v_add_u32 v254, s53, v233")
    c_p4_setup(c)
    a("v_mov_b32 v113, v253")
    c.p3_setup_emitted = False
    a("s_waitcnt vmcnt(0)")
    flag_store(c, F2B, mode)
    a("v_mov_b32 v253, v113")
    c.stamp("C", "f2b_st")

def kreduce(c, AC, scr, barname, barname0, pre=None):
    a = c.a
    if barname0:
        a("s_waitcnt lgkmcnt(0)")
        c.bar("C", barname0)
    a("""
    s_lshl_b32 s52, s44, 12
    s_add_u32 s52, s52, %d
    v_add_u32 v200, s52, v0
    s_xor_b32 s53, s44, 1
    s_lshl_b32 s53, s53, 12
    s_add_u32 s53, s53, %d
    v_add_u32 v201, s53, v0
    s_cmp_eq_u32 s57, 0
    s_nop 7
    """ % (scr, scr))
    lab = a.newlabel("L_kr")
    a("s_cbranch_scc1 %s_a" % lab)
    for q in range(4): a("ds_write_b128 v200, %s offset:%d" % (v4(AC[0] + 4 * q), 1024 * q))
    for q in range(16): a("v_mov_b32 v%d, v%d" % (36 + q, AC[1] + q)) if AC[1] != 36 else None
    a("s_branch %s_b" % lab)
    a.label(lab + "_a")
    for q in range(4): a("ds_write_b128 v200, %s offset:%d" % (v4(AC[1] + 4 * q), 1024 * q))
    for q in range(16): a("v_mov_b32 v%d, v%d" % (36 + q, AC[0] + q))
    a.label(lab + "_b")
    if pre: pre()
    a("s_waitcnt lgkmcnt(0)")
    c.bar("C", barname)
    for q in range(4): a("ds_read_b128 %s, v201 offset:%d" % (v4(52 + 4 * q - (0)), 1024 * q)) if False else None
    T = 208
    for q in range(4): a("ds_read_b128 %s, v201 offset:%d" % (v4(T + 4 * q), 1024 * q))
    for q in range(4):
        a("s_waitcnt lgkmcnt(%d)" % (3 - q))
        a("v_pk_add_f32 %s, %s, %s" % (v2(36 + 4 * q), v2(36 + 4 * q), v2(T + 4 * q)))
        a("v_pk_add_f32 %s, %s, %s" % (v2(38 + 4 * q), v2(38 + 4 * q), v2(T + 4 * q + 2)))

P3_D, P3_NS = 4, 6
def plan_p3(c):
    gaps = c.opt.get('p3gaps', [72, 88, 104, 120, 136, 152, 168, 200, 216, 232, 248])
    out = []
    for k, g in enumerate(gaps):
        free = -1
        for L in range(64):
            p, s = divmod(L, 32)
            last = (64 if p == 0 else 192) + 2 * s + 1
            if last < g: free = L
            else: break
        nxt = gaps[k + 1] if k + 1 < len(gaps) else 256
        vis = 34
        for L in range(32, 64):
            s = L - 32
            if 128 + 2 * s - P3_D < nxt: vis = max(vis, L)
        out.append((g, free, vis))
    c.p3_bars = out
    c.p4a_vis = 64 + 18

def c_p3(c, mode):
    a = c.a
    sc = " sc1" if mode == "G" else ""
    W = bsrd(SRD_WS)
    VA, VW, ACC, FR, TMP, BF = 2, 6, 10, 74, 98, 116
    D, NS = P3_D, P3_NS
    a("""
    s_cmp_ge_u32 s46, 14
    s_cselect_b32 s66, 1, 0
    s_mul_i32 s53, s66, 14
    s_sub_u32 s67, s46, s53
    s_lshl_b32 s52, s66, 1
    s_lshr_b32 s53, s44, 1
    s_add_u32 s52, s52, s53
    s_lshl_b32 s52, s52, 7
    s_lshl_b32 s53, s45, 12
    s_add_u32 s52, s52, s53
    s_add_u32 s52, s52, %d
    v_lshlrev_b32 v111, 2, v1
    v_add_u32 v111, s52, v111
    """ % (WS_FLAG + F2B))
    a("""
    s_lshl_b32 s52, s45, 3
    s_lshl_b32 s53, s66, 2
    s_add_u32 s52, s52, s53
    s_add_u32 s68, s52, s44
    s_lshl_b32 s52, s68, 15
    s_add_u32 s62, s52, %d
    """ % WS_H2F)
    vm = VM()
    NB0 = c.opt.get("p3nb", 8)
    def bload(s):
        if s and s % 4 == 0: a("s_add_u32 s62, s62, 4096")
        a("buffer_load_dwordx4 %s, v0, %s, s62 offen offset:%d sc1" % (v4(BF + 4 * s), W, (s % 4) * 1024))
        vm.issue(("B", s))
    a("""
    s_mul_i32 s69, s68, 112
    s_lshl_b32 s53, s67, 3
    s_add_u32 s69, s69, s53
    s_lshl_b32 s69, s69, 10
    s_add_u32 s69, s69, %d
    s_mov_b32 s77, 0x%x
    """ % (WS_HHF, L2E))
    if c.opt.get("pswap", 1):
        a("""
        s_and_b32 s53, s67, 1
        s_lshl_b32 s53, s53, 12
        s_sub_u32 s78, s69, s53
        s_add_u32 s69, s69, s53
        """)
    else:
        a("s_mov_b32 s78, s69")
    a("""
    v_lshrrev_b32 v98, 4, v1
    v_and_b32 v99, 1, v98
    v_lshrrev_b32 v98, 1, v98
    v_and_b32 v100, 15, v1
    v_lshrrev_b32 v101, 2, v100
    v_and_b32 v102, 3, v100
    v_lshl_add_u32 v103, v98, 2, v101
    v_lshlrev_b32 v103, 7, v103
    v_lshl_add_u32 v103, v99, 11, v103
    v_and_b32 v104, 1, v102
    v_lshl_add_u32 v103, v104, 3, v103
    v_lshrrev_b32 v104, 1, v102
    v_lshl_add_u32 v103, v104, 4, v103
    v_lshrrev_b32 v105, 1, v101
    v_lshlrev_b32 v105, 1, v105
    v_lshl_add_u32 v105, v99, 2, v105
    """)
    for t in range(4):
        a("v_xor_b32 v106, %d, v105" % (2 * t))
        a("v_lshl_add_u32 v%d, v106, 4, v103" % (VA + t))
    seq = []
    for p in range(2):
        for half in range(2):
            for s in range(32):
                for tt in range(2):
                    seq.append((p, 2 * half + tt, s, ACC + 32 * half + 16 * tt, s == 0))
    N = len(seq)
    def winregs(half):
        return ["v_add_u32 v%d, 0x%x, v%d" % (VW + 2 * (w - 1) + tt, 0x10000 * w, VA + 2 * half + tt) for w in (1, 2) for tt in range(2)]
    def reads(i):
        p, t, s, acc, first = seq[i]
        fr = FR + 4 * (i % NS)
        ph = phys(32 * p + s)
        w = ph // 16
        va = (VA + t) if w == 0 else (VW + 2 * (w - 1) + (t & 1))
        off = (ph % 16) * 4096
        a("ds_read_b64_tr_b16 %s, v%d offset:%d" % (v2(fr), va, off))
        a("ds_read_b64_tr_b16 %s, v%d offset:%d" % (v2(fr + 2), va, off + 1024))
    cost = lambda x: 2 if x[0] == "t" else 1
    def epi(acc, tile, T, PK):
        ins = []
        for i in range(0, 8, 2):
            ins.append(("t", "v_exp_f32 v%d, -v%d" % (T + i, acc + i)))
            ins.append(("t", "v_exp_f32 v%d, -v%d" % (T + i + 1, acc + i + 1)))
            ins.append(("v", "v_fma_f32 v%d, v%d, s77, s77" % (T + i, T + i)))
            ins.append(("v", "v_fma_f32 v%d, v%d, s77, s77" % (T + i + 1, T + i + 1)))
            ins.append(("t", "v_rcp_f32 v%d, v%d" % (T + i, T + i)))
            ins.append(("t", "v_rcp_f32 v%d, v%d" % (T + i + 1, T + i + 1)))
            ins.append(("v", "v_mul_f32 v%d, v%d, v%d" % (T + i, T + i, acc + 8 + i)))
            ins.append(("v", "v_mul_f32 v%d, v%d, v%d" % (T + i + 1, T + i + 1, acc + 8 + i + 1)))
            ins.append(("v", "v_cvt_pk_bf16_f32 v%d, v%d, v%d" % (PK + i // 2, T + i, T + i + 1)))
        ins.append(("s", "s_add_u32 s70, s%d, %d" % (69 if tile < 4 else 78, tile * 1024)))
        ins.append(("store", PK, tile))
        return ins
    def emit(x):
        if x[0] in ("s", "v", "t"): a(x[1])
        elif x[0] == "store":
            a("buffer_store_dwordx4 %s, v0, %s, s70 offen%s" % (v4(x[1]), W, sc if c.opt.get("hhlocal") else " sc1")); vm.issue(("ST", x[2]))
        elif x[0] == "flag":
            k = x[1]
            w = vm.wait(lambda t: t[0] == "ST")
            if w: a(w)
            a("s_add_u32 s71, s73, %d" % (512 * k))
            a("s_mov_b64 exec, 1")
            a("buffer_store_dword v114, v0, %s, s71 offen%s" % (W, sc)); vm.issue(("FL", k))
            a("s_mov_b64 exec, -1")
    a("v_mov_b32 v114, s49")
    streams = {}
    for k in range(3):
        half = k % 2
        st = []
        for tt in range(2): st += epi(ACC + 32 * half + 16 * tt, 2 * k + tt, TMP, TMP + 8 + 4 * tt)
        streams[k + 1] = st
    bars = {g: (f, v) for (g, f, v) in c.p3_bars}
    for x in winregs(0): a(x)
    poll(c, None, 32, S_NONCE, None, "L_f2b_" + mode, vtmp=110)
    c.stamp("C", "f2b")
    for s_ in range(NB0): bload(s_)
    c.bar("C", "P3A")
    for i in range(D): reads(i)
    pend = []
    flagpend = None
    budget = c.opt.get("budget", 6)
    for i in range(N):
        ps = i // 64
        if i % 64 == 3 and ps in streams: pend = list(streams[ps])
        used = 0
        if i in (64, 128, 192) and not c.opt.get("p3stamps"): c.stamp("C", "pass")
        if i in bars:
            if c.opt.get("p3stamps"): c.stamp("C", "b%d" % i)
            c.bar("C", "P3_%d" % i); used += 1
            if c.opt.get("p3stamps"): c.stamp("C", "a%d" % i)
        if (i + D) % 64 == 0 and i + D < N:
            for x in winregs(((i + D) // 64) % 2): a(x)
            used += 4
        if i + D < N: reads(i + D); used += 2
        if i % 2 == 0: used += 1
        remaining_gaps = 56 - (i % 64)
        while pend:
            cst = cost(pend[0])
            if remaining_gaps > 0 and used + cst > budget: break
            emit(pend.pop(0)); used += cst
            if not pend and ps <= 2: flagpend = (ps - 1, i + c.opt.get('flagdelay', 42))
        if flagpend and i >= flagpend[1]:
            emit(("flag", flagpend[0])); flagpend = None
        if i == c.opt.get("pf3at", 236):
            set_exec(a, 28)
            a("buffer_load_dword v252, v253, %s, 0 offen sc1" % W); vm.issue(("PF3",))
            a("s_mov_b64 exec, -1")
        p, t, s, acc, first = seq[i]
        if i < 64 and t == 0:
            if s + NB0 < 32: bload(s + NB0)
            w = vm.wait(lambda tg: tg[0] == "B" and tg[1] <= s)
            if w: a(w)
        if i % 2 == 0:
            rem = min(D, N - 1 - i)
            a("s_waitcnt lgkmcnt(%d)" % max(0, 2 * (rem - 1)))
        fr = FR + 4 * (i % NS)
        a("v_mfma_f32_32x32x16_bf16 v[%d:%d], %s, %s, %s" % (acc, acc + 15, v4(fr), v4(BF + 4 * s), "0" if first else "v[%d:%d]" % (acc, acc + 15)))
    assert not pend and flagpend is None
    c.stamp("C", "p3mm")
    pre = c_p4_pre(c, mode, "a", weave=True)
    pre["check"](vm.wait(lambda tg: tg[0] == "PF3"))
    a("s_nop 3")
    e6 = epi(ACC + 32, 6, TMP, TMP + 8)
    e7 = epi(ACC + 48, 7, TMP, TMP + 12)
    k = 0
    NE = c.opt.get("p4early", 6)
    for n, x in enumerate(e6):
        emit(x)
        if n % 6 == 5 and k < NE and x[0] != "s":
            pre["hload"](k); k += 1; vm.issue(("H", k))
    for x in e7:
        if x[0] == "s" and c.opt.get("f32early", 1):
            w = vm.wait(lambda tg: tg[0] == "ST" and tg[1] <= 5)
            if w: a(w)
            a("s_add_u32 s71, s73, %d" % (512 * 2))
            a("s_mov_b64 exec, 1")
            a("buffer_store_dword v114, v0, %s, s71 offen%s" % (W, sc)); vm.issue(("FL", 2))
            a("s_mov_b64 exec, -1")
        emit(x)
    while k < P4_RD - 1:
        pre["hload"](k); k += 1
    assert k == P4_RD - 1, k

P4_RD = 12
def plan_p4(c):
    js = [8, 16, 24, 32, 40, 48]
    out = []
    for k, j in enumerate(js):
        nxt = js[k + 1] if k + 1 < len(js) else 56
        free = 64 + j - 1
        vis = 64 + min(55, nxt)
        out.append((j, free, vis))
    c.p4_bars = out
    c.p4a_vis = 64 + js[0]

def c_p4_setup(c):
    a = c.a
    a("""
    s_lshr_b32 s52, s47, 1
    s_mul_i32 s52, s52, 14
    s_lshl_b32 s52, s52, 4
    s_and_b32 s53, s47, 1
    s_lshl_b32 s53, s53, 1
    s_add_u32 s53, s53, s58
    s_lshl_b32 s53, s53, 2
    s_add_u32 s52, s52, s53
    s_lshl_b32 s53, s45, 12
    s_add_u32 s52, s52, s53
    s_add_u32 s74, s52, %d
    v_mul_u32_u24 v98, 0x4925, v1
    v_lshrrev_b32 v98, 18, v98
    v_mul_u32_u24 v99, 14, v98
    v_sub_u32 v99, v1, v99
    v_lshlrev_b32 v99, 4, v99
    v_lshl_add_u32 v99, v98, 9, v99
    v_add_u32 v253, s74, v99
    s_lshl_b32 s52, s45, 12
    s_lshl_b32 s53, s46, 4
    s_add_u32 s52, s52, s53
    s_lshl_b32 s53, s44, 2
    s_add_u32 s52, s52, s53
    s_add_u32 s73, s52, %d
    """ % (WS_FLAG + F3, WS_FLAG + F3))
    a("""
    s_lshl_b32 s52, s45, 3
    s_lshl_b32 s53, s47, 1
    s_add_u32 s52, s52, s53
    s_add_u32 s52, s52, s58
    s_mul_i32 s52, s52, 112
    s_add_u32 s52, s52, s57
    s_lshl_b32 s52, s52, 10
    s_add_u32 s75, s52, %d
    """ % WS_HHF)

def c_p4_pre(c, mode, tag, weave=False):
    a = c.a
    W = bsrd(SRD_WS)
    FR, HB = 74, 116
    RD = P4_RD
    a("""
    v_mov_b32 v164, v115
    v_mov_b32 v165, v254
    v_add_u32 v166, 0x10000, v115
    v_add_u32 v167, 0x10000, v254
    v_add_u32 v168, 0x20000, v115
    v_add_u32 v169, 0x20000, v254
    """)
    lab = "L_f3_" + mode + tag
    if not weave:
        poll(c, None, 28, S_NONCE, None, lab, vtmp=252, sleep=c.opt.get("idlesleep", 0))
        c.stamp("C", "f3")
    def hload(j):
        k, fs = divmod(j, 14)
        a("s_add_u32 s76, s75, %d" % ((8 * fs + p4_tile2(c, k, fs)) * 1024))
        a("buffer_load_dwordx4 %s, v0, %s, s76 offen sc1" % (v4(HB + 4 * (j % RD)), W))
    if not weave:
        NE = c.opt.get("p4early", 6)
        for j in range(NE): hload(j)
        a("buffer_load_dword v252, v253, %s, 0 offen sc1" % W)
        for j in range(NE, RD - 1): hload(j)
        return None
    def check(wait):
        if wait: a(wait)
        set_exec(a, 28)
        a("v_cmp_ne_u32 vcc, s49, v252")
        a("s_cbranch_vccz %s_ok" % lab)
        a("s_mov_b64 exec, -1")
        poll(c, None, 28, S_NONCE, None, lab, vtmp=252)
        a.label(lab + "_ok")
        a("s_mov_b64 exec, -1")
        c.stamp("C", "f3")
    return dict(check=check, hload=hload)

def c_p4(c, mode):
    a = c.a
    W = bsrd(SRD_WS)
    AC = (4, 20)
    FR, HB = 74, 116
    RD = P4_RD
    vm = VM()
    NE = c.opt.get("p4early", 6)
    for j in range(NE): vm.issue(("H", j))
    vm.issue(("ST", 7))
    for j in range(NE, RD - 1): vm.issue(("H", j))
    def hload(j):
        k, fs = divmod(j, 14)
        a("s_add_u32 s76, s75, %d" % ((8 * fs + p4_tile2(c, k, fs)) * 1024))
        a("buffer_load_dwordx4 %s, v0, %s, s76 offen sc1" % (v4(HB + 4 * (j % RD)), W))
        vm.issue(("H", j))
    def reads(j):
        ph = phys(64 + j); w = ph // 16; off = (ph % 16) * 4096
        fr = FR + 8 * (j % 3)
        for cb2 in range(2):
            va = 164 + 2 * w + cb2
            a("ds_read_b64_tr_b16 %s, v%d offset:%d" % (v2(fr + 4 * cb2), va, off))
            a("ds_read_b64_tr_b16 %s, v%d offset:%d" % (v2(fr + 4 * cb2 + 2), va, off + 1024))
    c.bar("C", "P4A")
    reads(0)
    bars = {j: (f, v) for (j, f, v) in c.p4_bars}
    nxt_h = RD - 1
    PF = {} if (c.opt.get('stage', 1) or c.opt.get('lpoll')) else {2: (6, 16), 3: (20, 30)}
    for j in range(56):
        if c.opt.get("p4stamps") and j % 8 == 0: c.stamp("C", "s%d" % j)
        if j in bars:
            a("s_waitcnt lgkmcnt(0)")
            c.bar("C", "P4_%d" % j)
            if c.opt.get("p4stamps") and j % 16 == 0: c.stamp("C", "b%d" % j)
        for k, (ji, jc) in PF.items():
            if j == ji:
                a("v_lshlrev_b32 v99, 4, v1")
                a("v_add_u32 v253, s74, v99")
                a("s_mov_b64 exec, 0x3fff")
                a("buffer_load_dword v252, v253, %s, 0 offen offset:%d sc1" % (W, 512 * k)); vm.issue(("PF", k))
                a("s_mov_b64 exec, -1")
            if j == jc:
                w = vm.wait(lambda t: t[0] == "PF" and t[1] == k)
                if w: a(w)
                lab = "L_f3b%d_%s" % (k, mode)
                a("s_mov_b64 exec, 0x3fff")
                a("v_cmp_ne_u32 vcc, s49, v252")
                a("s_cbranch_vccz %s_ok" % lab)
                a("v_add_u32 v253, %d, v253" % (512 * k))
                a("s_mov_b64 exec, -1")
                poll(c, None, 14, S_NONCE, None, lab, vtmp=252)
                a.label(lab + "_ok")
                a("s_mov_b64 exec, -1")
        if j + 1 < 56: reads(j + 1)
        lim = 56
        if c.opt.get("stage", 1) or c.opt.get("lpoll"):
            if j < c.opt.get("g2", 16): lim = 28
            elif j < c.opt.get("g3", 24): lim = 42
        while nxt_h < min(lim, j + RD, 56):
            hload(nxt_h); nxt_h += 1
        w = vm.wait(lambda t: t[0] == "H" and t[1] <= j)
        if w: a(w)
        for k, jp in (((3, NE),) if c.opt.get("f32early", 1) else ((2, 0), (3, NE))):
            if j == jp:
                a("s_add_u32 s71, s73, %d" % (512 * k))
                a("v_mov_b32 v250, s49") if False else None
                a("v_mov_b32 v114, s49")
                a("s_mov_b64 exec, 1")
                a("buffer_store_dword v114, v0, %s, s71 offen%s" % (W, " sc1" if mode == "G" else ""))
                a("s_mov_b64 exec, -1")
                vm.issue(("FL", k))
        a("s_waitcnt lgkmcnt(%d)" % (4 if j + 1 < 56 else 0))
        fr = FR + 8 * (j % 3)
        for cb2 in range(2):
            acc = AC[cb2]
            a("v_mfma_f32_32x32x16_bf16 v[%d:%d], %s, %s, %s" % (acc, acc + 15, v4(fr + 4 * cb2), v4(HB + 4 * (j % RD)), "0" if j == 0 else "v[%d:%d]" % (acc, acc + 15)))
    c.stamp("C", "p4mm")
    kreduce(c, AC, 0, "P4Y", "P4X")
    R = 36
    a("""
    v_lshrrev_b32 v200, 5, v1
    v_lshlrev_b32 v200, 4, v200
    s_lshl_b32 s53, s57, 7
    s_add_u32 s53, s53, %d
    v_add_u32 v238, s53, v200
    """ % (LDS_VEC + 768))
    GB = 64
    for j in range(4): a("ds_read_b128 %s, v238 offset:%d" % (v4(GB + 4 * j), 32 * j))
    a("s_mov_b32 s56, 0xffff0000")
    XF = 80
    for d in range(8):
        a("v_lshlrev_b32 v%d, 16, v%d" % (XF + 2 * d, X2P + d))
        a("v_and_b32 v%d, s56, v%d" % (XF + 2 * d + 1, X2P + d))
    a("""
    s_lshl_b32 s52, s45, 8
    s_lshl_b32 s53, s47, 6
    s_add_u32 s52, s52, s53
    s_lshl_b32 s53, s58, 5
    s_add_u32 s52, s52, s53
    v_and_b32 v236, 31, v1
    v_add_u32 v236, s52, v236
    v_lshlrev_b32 v236, 10, v236
    v_lshrrev_b32 v237, 5, v1
    v_lshl_add_u32 v236, v237, 3, v236
    s_lshl_b32 s52, s48, 7
    s_lshl_b32 s53, s57, 6
    s_add_u32 s52, s52, s53
    v_add_u32 v236, s52, v236
    """)
    srd(a, SRD_X, S_OUT, 2048 * 1024)
    a("s_waitcnt lgkmcnt(0)")
    for d in range(8):
        a("v_pk_fma_f32 %s, %s, %s, %s" % (v2(R + 2 * d), v2(R + 2 * d), v2(GB + 2 * d), v2(XF + 2 * d)))
    for d in range(8): a("v_cvt_pk_bf16_f32 v%d, v%d, v%d" % (4 + d, R + 2 * d, R + 2 * d + 1))
    if c.opt.get("wideout", 1):
        a("v_lshl_add_u32 v236, v237, 3, v236")
        a("s_nop 0")
        for p in range(2):
            a("v_permlane32_swap_b32 v%d, v%d" % (4 + 4 * p, 6 + 4 * p))
            a("v_permlane32_swap_b32 v%d, v%d" % (5 + 4 * p, 7 + 4 * p))
        a("s_nop 0")
        for p in range(2):
            a("buffer_store_dwordx4 %s, v236, %s, 0 offen offset:%d%s" % (v4(4 + 4 * p), bsrd(SRD_X), 32 * p, c.opt.get("outflag", "")))
    else:
        for j in range(4):
            a("buffer_store_dwordx2 %s, v236, %s, 0 offen offset:%d%s" % (v2(4 + 2 * j), bsrd(SRD_X), 16 * j, c.opt.get("outflag", "")))

def p0_dot(c, waits):
    a = c.a
    a("s_mov_b32 s56, 0xffff0000")
    a("s_mov_b32 s57, 0xbfb8aa3b")
    for j in range(8): a("v_lshlrev_b32 v%d, 16, v%d" % (24 + j, 24 + j))
    for j in range(8): a("v_mul_f32 v%d, s57, v%d" % (64 + j, 24 + j))
    for j in range(8): a("v_exp_f32 v%d, v%d" % (64 + j, 64 + j))
    a("s_nop 0")
    for j in range(8): a("v_add_f32 v%d, 1.0, v%d" % (64 + j, 64 + j))
    for j in range(8): a("v_rcp_f32 v%d, v%d" % (64 + j, 64 + j))
    a("s_nop 0")
    for j in range(8): a("v_mul_f32 v%d, v%d, v%d" % (64 + j, 64 + j, 24 + j))
    for j in range(8): a("v_cvt_pk_bf16_f32 v%d, v%d, v%d" % (64 + j, 64 + j, 64 + j))
    for j in range(8):
        a("v_and_b32 v%d, 0xffff, v%d" % (24 + j, 64 + j))
        a("v_and_b32 v%d, s56, v%d" % (64 + j, 64 + j))
    for i in range(8): a("v_mov_b32 v%d, 0" % (72 + i))
    for j in range(8):
        if waits is not None: a("s_waitcnt vmcnt(%d)" % (7 - j + waits))
        for d in range(4):
            a("v_dot2c_f32_bf16 v%d, v%d, v%d" % (72 + 2 * d, 32 + 4 * j + d, 24 + j))
            a("v_dot2c_f32_bf16 v%d, v%d, v%d" % (73 + 2 * d, 32 + 4 * j + d, 64 + j))
    if waits is not None: c.stamp("L", "dot")
    a("s_nop 1")
    for i in range(4): a("v_permlane32_swap_b32 v%d, v%d" % (72 + i, 76 + i))
    a("s_nop 0")
    for i in range(4): a("v_add_f32 v%d, v%d, v%d" % (72 + i, 72 + i, 76 + i))
    a("s_nop 1")
    for i in range(2): a("v_permlane16_swap_b32 v%d, v%d" % (72 + i, 74 + i))
    a("s_nop 0")
    for i in range(2): a("v_add_f32 v%d, v%d, v%d" % (72 + i, 72 + i, 74 + i))
    a("s_nop 1")
    for i in range(2): a("v_add_f32_dpp v%d, v%d, v%d row_ror:8 row_mask:0xf bank_mask:0xf" % (72 + i, 72 + i, 72 + i))

def l_start(c):
    a = c.a
    vm = c.vmL = VM()
    a("s_sub_u32 s44, s44, 4")
    a("s_cmp_lg_u32 s44, 1")
    a("s_cbranch_scc1 L_l_nononce")
    a("s_cmp_lg_u32 s2, 0")
    a("s_cbranch_scc1 L_l_nononce")
    a("""
    s_memrealtime s[54:55]
    s_waitcnt lgkmcnt(0)
    s_or_b32 s54, s54, 1
    s_mov_b64 exec, 1
    v_mov_b32 v5, 132
    v_mov_b32 v6, s54
    global_store_dword v5, v6, s[24:25] sc1
    s_mov_b64 exec, -1
    """)
    a.label("L_l_nononce")
    a("s_cmp_ge_u32 s2, 96")
    a("s_cbranch_scc1 L_l_nop0a")
    a("s_cmp_lt_u32 s2, 32")
    a("s_cbranch_scc1 L_l_nos1b")
    a("s_barrier")
    a.label("L_l_nos1b")
    srd(a, SRD_B, S_WMOD, 512 * 6144)
    srd(a, SRD_X, S_C, 1024)
    a("""
    s_and_b32 s52, s2, 1
    s_lshl_b32 s52, s52, 8
    s_lshl_b32 s53, s44, 6
    s_add_u32 s52, s52, s53
    v_lshrrev_b32 v20, 3, v1
    v_add_u32 v20, s52, v20
    v_lshlrev_b32 v21, 1, v20
    v_mul_u32_u24 v20, 6144, v20
    v_and_b32 v22, 7, v1
    v_lshl_add_u32 v20, v22, 4, v20
    s_lshr_b32 s53, s2, 1
    s_lshl_b32 s54, s53, 7
    v_add_u32 v20, s54, v20
    """)
    for j in range(8):
        a("buffer_load_ushort v%d, v21, %s, 0 offen offset:%d" % (24 + j, bsrd(SRD_X), 16 * j))
    for j in range(8):
        a("s_mov_b32 s55, %d" % (49152 * j))
        a("buffer_load_dwordx4 %s, v20, %s, s55 offen" % (v4(32 + 4 * j), bsrd(SRD_B)))
    a("v_mov_b32 v6, 132")
    a("global_load_dword v5, v6, s[24:25] sc1")
    a("s_cmp_ge_u32 s2, 32")
    a("s_cbranch_scc1 L_l_nos0")
    c.bar("L", "S0")
    a.label("L_l_nos0")
    a("s_branch L_l_nopref")
    a.label("L_l_nop0a")
    if c.opt.get("early_code"): a("s_branch L_l_nocode0")
    a("s_cmp_lg_u32 s44, 0")
    a("s_cbranch_scc1 L_l_nocode")
    a("s_getpc_b64 s[56:57]")
    a.label("L_pc")
    a("s_sub_u32 s56, s56, L_pc-%s" % NAME)
    a("s_subb_u32 s57, s57, 0")
    a("s_sub_u32 s53, s46, 12")
    a("s_mul_i32 s53, s53, (L_code_end-%s+128*20-1)/(128*20)" % NAME)
    a("v_add_u32 v2, s53, v1")
    a("v_lshlrev_b32 v2, 7, v2")
    a("s_mov_b32 s58, L_code_end-%s-4" % NAME)
    a("v_min_u32 v3, s58, v2")
    a("s_mov_b32 exec_hi, 0")
    a("global_load_dword v4, v3, s[56:57]")
    a("s_mov_b64 exec, -1")
    a("s_branch L_l_nopref")
    if c.opt.get("early_code"):
        a.label("L_l_nocode0")
        a("s_cmp_eq_u32 s44, 0")
        a("s_cbranch_scc1 L_l_nopref")
    a.label("L_l_nocode")
    if c.opt.get("touchq", 1):
        a("""
        s_sub_u32 s53, s2, 96
        s_mul_i32 s53, s53, 3
        s_add_u32 s53, s53, s44
        s_sub_u32 s53, s53, 1
        s_mul_i32 s53, s53, 35
        v_min_u32 v3, 34, v1
        v_add_u32 v3, s53, v3
        v_min_u32 v3, 16383, v3
        v_cmp_gt_u32 vcc, 12288, v3
        v_subrev_u32 v2, 12288, v3
        v_lshlrev_b32 v3, 7, v3
        v_lshlrev_b32 v2, 7, v2
        """)
        set_exec(a, 35)
        a("s_and_saveexec_b64 s[80:81], vcc")
        a("s_cbranch_execz L_l_tq1")
        a("global_load_dword v4, v3, s[6:7]")
        a.label("L_l_tq1")
        a("s_andn2_b64 exec, s[80:81], exec")
        a("s_cbranch_execz L_l_tq2")
        a("global_load_dword v4, v2, s[8:9]")
        a.label("L_l_tq2")
        a("s_mov_b64 exec, -1")
    a.label("L_l_nopref")
    npref = 0
    if c.opt.get("touch4", 0):
        c.bar("L", "S1")
        a("s_cmp_lt_u32 s2, 32")
        a("s_cbranch_scc1 L_l_t4dummy")
        l_touch_block(c)
        a("s_branch L_l_t4done")
        a.label("L_l_t4dummy")
        a("v_mov_b32 v20, 0")
        a("s_mov_b64 exec, 1")
        a("global_load_dword v4, v20, s[24:25] sc1")
        a("global_load_dword v4, v20, s[24:25] sc1")
        a("s_mov_b64 exec, -1")
        a.label("L_l_t4done")
        npref = 2
        vm.q = []
    srd(a, SRD_A, S_WQKV, 512 * 3072)
    a("""
    v_lshrrev_b32 v10, 3, v1
    s_lshl_b32 s53, s44, 3
    v_add_u32 v10, s53, v10
    v_mul_u32_u24 v10, 3072, v10
    v_lshrrev_b32 v11, 4, v1
    v_and_b32 v11, 1, v11
    v_lshlrev_b32 v11, 1, v11
    s_and_b32 s53, s44, 1
    s_lshl_b32 s53, s53, 2
    v_add_u32 v11, s53, v11
    v_and_b32 v12, 7, v1
    v_xor_b32 v11, v11, v12
    v_lshl_add_u32 v10, v11, 4, v10
    s_lshl_b32 s53, s48, 7
    v_add_u32 v10, s53, v10
    s_mul_i32 s62, s44, 3072
    s_add_u32 s62, s62, %d
    """ % LDS_RING)
    def stage(s):
        a("s_mov_b32 s63, %d" % (s * 98304))
        a("s_add_u32 m0, s62, %d" % ((s % 6) * 12288))
        a("s_nop 0")
        for m in range(3):
            a("buffer_load_dwordx4 v10, %s, s63 offen offset:%d lds" % (bsrd(SRD_A), m * 1024))
            vm.issue(("W1", s))
    c.l_stage = stage
    if c.opt.get("q3") == 1:
        a("s_cmp_lt_u32 s2, 32")
        a("s_cbranch_scc1 L_l_q3_late")
        l_touch_q3(c)
        a.label("L_l_q3_late")
    def touches():
        a("""
        s_lshl_b32 s52, s47, 2
        s_add_u32 s52, s52, s44
        s_mul_i32 s52, s52, 20
        v_and_b32 v14, 31, v1
        v_min_u32 v14, 19, v14
        v_add_u32 v14, s52, v14
        v_add_u32 v14, 192, v14
        v_mul_u32_u24 v14, 3072, v14
        s_lshl_b32 s53, s48, 7
        v_add_u32 v14, s53, v14
        v_lshrrev_b32 v15, 5, v1
        v_lshl_add_u32 v14, v15, 10, v14
        """)
        a("buffer_load_dword v4, v14, %s, 0 offen" % bsrd(SRD_A))
        a("s_mov_b32 exec_hi, 0")
        a("buffer_load_dword v4, v14, %s, 0 offen offset:2048" % bsrd(SRD_A))
        a("s_mov_b64 exec, -1")
    c.l_touches = touches
    if c.opt.get("touch") == 1:
        a("s_cmp_lt_u32 s2, 96")
        a("s_cbranch_scc1 L_l_notouch")
        touches()
        a.label("L_l_notouch")
    if c.opt.get("ring_early"):
        a("s_cmp_lt_u32 s2, 96")
        a("s_cbranch_scc1 L_l_noring")
        for s in range(6): stage(s)
        a.label("L_l_noring")
    a("s_cmp_ge_u32 s2, 32")
    a("s_cbranch_scc1 L_l_nop0")
    a("s_waitcnt vmcnt(%d)" % (8 + npref))
    c.stamp("L", "c")
    p0_dot(c, npref)
    a("""
    v_and_b32 v20, 7, v1
    v_lshlrev_b32 v20, 3, v20
    v_lshrrev_b32 v21, 5, v1
    v_lshl_add_u32 v20, v21, 2, v20
    v_lshrrev_b32 v21, 4, v1
    v_and_b32 v21, 1, v21
    v_lshl_add_u32 v20, v21, 1, v20
    v_lshlrev_b32 v20, 2, v20
    s_lshl_b32 s53, s44, 8
    s_add_u32 s53, s53, %d
    v_add_u32 v20, s53, v20
    ds_write_b64 v20, v[72:73]
    s_waitcnt lgkmcnt(0)
    """ % LDS_VEC)
    a("s_barrier")
    c.stamp("L", "p0bar")
    a("s_cmp_lg_u32 s44, 0")
    a("s_cbranch_scc1 L_l_p0done")
    a("""
    v_lshlrev_b32 v20, 2, v1
    v_add_u32 v21, %d, v20
    ds_read_b32 v24, v21
    ds_read_b32 v25, v21 offset:256
    ds_read_b32 v26, v21 offset:512
    ds_read_b32 v27, v21 offset:768
    s_and_b32 s52, s2, 1
    s_mul_i32 s52, s52, 12288
    s_lshr_b32 s53, s2, 1
    s_lshl_b32 s53, s53, 8
    s_add_u32 s52, s52, s53
    s_add_u32 s52, s52, %d
    s_waitcnt lgkmcnt(0)
    v_add_f32 v24, v24, v25
    v_add_f32 v26, v26, v27
    v_add_f32 v24, v24, v26
    """ % (LDS_VEC, WS_MODP))
    a("""
    s_and_b32 s52, s2, 1
    s_mul_i32 s52, s52, 24576
    s_lshr_b32 s53, s2, 1
    s_lshl_b32 s53, s53, 9
    s_add_u32 s52, s52, s53
    s_add_u32 s52, s52, %d
    v_lshlrev_b32 v20, 3, v1
    v_mov_b32 v6, 132
    s_mov_b32 s72, 0
    """ % WS_GRA)
    a.label("L_l_non")
    a("""
    s_waitcnt vmcnt(0)
    v_readfirstlane_b32 s49, v5
    s_add_u32 s72, s72, 1
    s_cmp_gt_u32 s72, 0x100000
    s_cbranch_scc1 L_l_non_out
    s_cmp_lg_u32 s49, 0
    s_cbranch_scc1 L_l_non_out
    global_load_dword v5, v6, s[24:25] sc1
    s_branch L_l_non
    """)
    a.label("L_l_non_out")
    a("v_mov_b32 v25, v5")
    a("s_nop 0")
    a("buffer_store_dwordx2 v[24:25], v20, %s, s52 offen sc1" % bsrd(SRD_WS))
    c.stamp("L", "modst")
    a.label("L_l_p0done")
    if c.opt.get("q3") == 1:
        s_ = c.a.text()
        txt0 = len(c.a.lines)
        l_touch_q3(c)
        for k in range(txt0, len(c.a.lines)): c.a.lines[k] = c.a.lines[k].replace("L_l_q3_skip", "L_l_q3_skip2")
    if c.opt.get("touch4", 0):
        a("s_cmp_ge_u32 s2, 32")
        a("s_cbranch_scc1 L_l_t4late")
        l_touch_block(c, only_ws=True)
        a.label("L_l_t4late")
    if c.opt.get("touch") == 1: c.l_touches()
    if c.opt.get("ring_early"):
        for s in range(6): stage(s)
    a.label("L_l_nop0")

def l_touch_block(c, only_ws=False):
    a = c.a; vm = c.vmL
    W = bsrd(SRD_WS)
    a("""
    s_lshl_b32 s52, s45, 3
    s_lshl_b32 s53, s47, 1
    s_add_u32 s52, s52, s53
    s_lshl_b32 s52, s52, 15
    s_lshl_b32 s53, s48, 12
    s_add_u32 s52, s52, s53
    s_mov_b32 s54, 0x%x
    s_cmp_eq_u32 s44, 1
    s_cselect_b32 s53, 0x%x, s54
    s_add_u32 s52, s52, s53
    v_and_b32 v40, 31, v1
    v_lshlrev_b32 v40, 7, v40
    v_lshrrev_b32 v41, 5, v1
    v_lshl_add_u32 v40, v41, 15, v40
    v_add_u32 v40, s52, v40
    s_lshl_b32 s52, s45, 2
    s_add_u32 s52, s52, s47
    s_lshl_b32 s52, s52, 14
    s_lshl_b32 s53, s48, 11
    s_add_u32 s52, s52, s53
    s_add_u32 s52, s52, %d
    s_lshl_b32 s53, s45, 12
    s_add_u32 s53, s53, %d
    v_lshlrev_b32 v41, 7, v1
    v_add_u32 v42, s52, v41
    v_min_u32 v43, 47, v1
    v_lshlrev_b32 v43, 7, v43
    v_add_u32 v41, s53, v43
    v_cmp_gt_u32 vcc, 16, v1
    s_nop 1
    v_cndmask_b32 v41, v41, v42, vcc
    s_cmp_ge_u32 s44, 2
    s_cselect_b64 vcc, -1, 0
    v_cndmask_b32 v40, v40, v41, vcc
    """ % (WS_OF, WS_H2F, WS_ST, WS_FLAG - 16 * 128))
    a("buffer_load_dword v44, v40, %s, 0 offen sc1" % W); vm.issue(("T", 0))
    if only_ws: return
    a("""
    s_sub_u32 s52, s2, 32
    s_lshl_b32 s52, s52, 2
    s_add_u32 s52, s52, s44
    s_mov_b32 s54, s8
    s_mov_b32 s55, s9
    s_cmp_ge_u32 s52, 64
    s_cselect_b32 s54, s12, s54
    s_cselect_b32 s55, s13, s55
    s_cselect_b32 s53, 64, 0
    s_cmp_ge_u32 s52, 288
    s_cselect_b32 s54, s14, s54
    s_cselect_b32 s55, s15, s55
    s_cselect_b32 s53, 288, s53
    s_cmp_ge_u32 s52, 512
    s_cselect_b32 s54, s16, s54
    s_cselect_b32 s55, s17, s55
    s_cselect_b32 s53, 512, s53
    s_sub_u32 s53, s52, s53
    s_lshl_b32 s53, s53, 13
    v_lshlrev_b32 v40, 7, v1
    v_add_u32 v40, s53, v40
    s_cmp_ge_u32 s52, 736
    s_cselect_b64 vcc, -1, 0
    v_cndmask_b32 v40, v40, 0, vcc
    """)
    a("global_load_dword v44, v40, s[54:55]"); vm.issue(("T", 1))

def l_touch_q3(c):
    a = c.a
    a("s_cmp_lg_u32 s44, 3")
    a("s_cbranch_scc1 L_l_q3_skip")
    a("""
    v_and_b32 v204, 15, v1
    s_lshl_b32 s53, s46, 4
    v_add_u32 v204, s53, v204
    v_mul_u32_u24 v204, 3072, v204
    v_lshrrev_b32 v205, 4, v1
    v_lshl_add_u32 v204, v205, 10, v204
    v_add_u32 v204, 384, v204
    """)
    set_exec(a, 48)
    a("buffer_load_dword v205, v204, %s, 0 offen" % bsrd(SRD_A))
    a("s_mov_b64 exec, -1")
    a.label("L_l_q3_skip")

def l_touch_w(c):
    a = c.a; vm = c.vmL
    a("""
    s_lshl_b32 s52, s2, 2
    s_add_u32 s52, s52, s44
    s_mov_b32 s54, s12
    s_mov_b32 s55, s13
    s_cmp_ge_u32 s52, 224
    s_cselect_b32 s54, s14, s54
    s_cselect_b32 s55, s15, s55
    s_cselect_b32 s53, 224, 0
    s_cmp_ge_u32 s52, 448
    s_cselect_b32 s54, s16, s54
    s_cselect_b32 s55, s17, s55
    s_cselect_b32 s53, 448, s53
    s_sub_u32 s53, s52, s53
    s_lshl_b32 s53, s53, 13
    v_lshlrev_b32 v46, 7, v1
    v_add_u32 v46, s53, v46
    s_cmp_ge_u32 s52, 672
    s_cselect_b64 vcc, -1, 0
    v_cndmask_b32 v46, v46, 0, vcc
    """)
    a("global_load_dword v47, v46, s[54:55]"); vm.issue(("TW",))

def l_wait(c, pred):
    a = c.a; vm = c.vmL
    idx = -1
    for i, t in enumerate(vm.q):
        if pred(t): idx = i
    if idx < 0: return
    younger = vm.q[idx + 1:]
    na = len([t for t in younger if t[0] != "Y"]); ni = len([t for t in younger if t[0] not in ("PS", "Y")])
    vm.q = younger
    assert na <= 63
    if na == ni:
        a("s_waitcnt vmcnt(%d)" % na); return
    lab = a.newlabel("L_lw")
    a("s_cmp_ge_u32 s46, 28")
    a("s_cbranch_scc1 %s_i" % lab)
    a("s_waitcnt vmcnt(%d)" % na)
    a("s_branch %s_d" % lab)
    a.label(lab + "_i")
    a("s_waitcnt vmcnt(%d)" % ni)
    a.label(lab + "_d")

def l_ps_load(c, L):
    c.a("s_add_u32 s63, s65, %d" % (L * 57344))
    c.a("buffer_load_dwordx4 %s, v11, %s, s63 offen" % (v4(STG + 4 * L), bsrd(SRD_X)))

STG = 64
def l_stage_write(c, L, n):
    ph = phys(L)
    c.a("ds_write_b128 v%d, %s offset:%d" % (200 + ph // 16, v4(STG + 4 * n), (ph % 16) * 4096))

def l_vec_issue(c, label=None):
    a = c.a; vm = c.vmL
    W = bsrd(SRD_WS)
    if label is None:
        a("""
        s_lshl_b32 s52, s45, 12
        s_add_u32 s52, s52, %d
        v_and_b32 v2, 31, v1
        v_lshlrev_b32 v2, 2, v2
        v_add_u32 v251, s52, v2
        s_mov_b32 s53, 0
        s_cmp_eq_u32 s44, 1
        s_cselect_b32 s52, 1024, s53
        s_cmp_eq_u32 s44, 2
        s_cselect_b32 s52, 512, s52
        s_cmp_eq_u32 s44, 3
        s_cselect_b32 s52, 1536, s52
        s_lshl_b32 s53, s48, 6
        s_add_u32 s52, s52, s53
        s_lshl_b32 s52, s52, 3
        s_add_u32 s68, s52, %d
        v_lshlrev_b32 v249, 3, v1
        s_mov_b32 s72, 0
        """ % (WS_FLAG + FHI, WS_GRB))
    else:
        a.label(label)
    a("buffer_load_dword v250, v251, %s, 0 offen sc1" % W)
    for k in range(8):
        a("s_add_u32 s69, s68, %d" % (16384 * k))
        a("buffer_load_dwordx2 %s, v249, %s, s69 offen sc1" % (v2(20 + 2 * k), W))
    if label is None:
        for k in range(9): vm.issue(("VX", k))

def l_vec_check(c):
    a = c.a; vm = c.vmL
    a("s_branch L_l_vx_chk")
    l_vec_issue(c, "L_l_vx")
    a("s_waitcnt vmcnt(0)")
    a.label("L_l_vx_chk")
    l_wait(c, lambda t: t[0] == "VX")
    a("""
    s_add_u32 s72, s72, 1
    v_subrev_u32 v3, s49, v250
    v_add_u32 v3, -1, v3
    v_xor_b32 v4, s49, v21
    v_xor_b32 v5, s49, v23
    v_xor_b32 v6, s49, v25
    v_or3_b32 v4, v4, v5, v6
    v_xor_b32 v5, s49, v27
    v_xor_b32 v6, s49, v29
    v_or3_b32 v4, v4, v5, v6
    v_xor_b32 v5, s49, v31
    v_xor_b32 v6, s49, v33
    v_or3_b32 v4, v4, v5, v6
    v_xor_b32 v5, s49, v35
    v_or_b32 v4, v4, v5
    v_cmp_lt_u32 s[80:81], 15, v3
    v_cmp_ne_u32 vcc, 0, v4
    s_cmp_gt_u32 s72, 0x100000
    s_cbranch_scc1 L_l_vx_out
    s_or_b64 vcc, vcc, s[80:81]
    s_cbranch_vccnz L_l_vx
    """)
    a.label("L_l_vx_out")
    a("""
    v_cmp_ne_u32 vcc, s50, v3
    s_mov_b32 s51, 1
    s_cbranch_vccz L_l_hi_loc
    s_mov_b32 s51, 0
    """)
    a.label("L_l_hi_loc")
    if c.opt["force_global"]: a("s_mov_b32 s51, 0")
    a("""
    v_mov_b32 v2, %d
    v_mov_b32 v3, s51
    ds_write_b32 v2, v3
    s_waitcnt lgkmcnt(0)
    """ % LDS_MODE)

def l_vec_finish(c):
    a = c.a
    a("""
    v_add_f32 v20, v20, v22
    v_add_f32 v24, v24, v26
    v_add_f32 v28, v28, v30
    v_add_f32 v32, v32, v34
    v_add_f32 v20, v20, v24
    v_add_f32 v28, v28, v32
    v_add_f32 v3, v20, v28
    v_cvt_pk_bf16_f32 v3, v3, v3
    s_mov_b32 s56, 0xffff0000
    v_and_b32 v3, s56, v3
    v_add_f32 v4, 1.0, v3
    v_cvt_pk_bf16_f32 v4, v4, v4
    v_and_b32 v4, s56, v4
    s_cmp_eq_u32 s44, 1
    s_cselect_b64 s[80:81], -1, 0
    v_cndmask_b32 v3, v3, v4, s[80:81]
    s_sub_u32 s52, s44, 1
    s_cmp_lt_u32 s52, 2
    s_cselect_b32 s53, 0x%x, 1.0
    v_mul_f32 v3, s53, v3
    s_lshl_b32 s52, s44, 8
    s_add_u32 s52, s52, %d
    v_lshlrev_b32 v2, 2, v1
    v_add_u32 v2, s52, v2
    ds_write_b32 v2, v3
    s_waitcnt lgkmcnt(0)
    """ % (L2E, LDS_VEC))

def l_p1(c):
    a = c.a; vm = c.vmL
    c.bar("L", "LN")
    vm.q = []
    if not c.opt.get("ring_early"):
        for s in range(c.opt.get("ringsplit", 6)): c.l_stage(s)
    if c.opt.get("touchL"):
        a("""
        s_lshl_b32 s52, s47, 2
        s_add_u32 s52, s52, s44
        s_mul_i32 s52, s52, 20
        v_and_b32 v206, 31, v1
        v_min_u32 v206, 19, v206
        v_add_u32 v206, s52, v206
        v_add_u32 v206, 192, v206
        v_mul_u32_u24 v206, 3072, v206
        s_lshl_b32 s53, s48, 7
        v_add_u32 v206, s53, v206
        v_lshrrev_b32 v207, 5, v1
        v_lshl_add_u32 v206, v207, 10, v206
        """)
        a("buffer_load_dword v207, v206, %s, 0 offen" % bsrd(SRD_A)); vm.issue(("TL", 0))
        a("s_mov_b32 exec_hi, 0")
        a("buffer_load_dword v207, v206, %s, 0 offen offset:2048" % bsrd(SRD_A)); vm.issue(("TL", 1))
        a("s_mov_b64 exec, -1")
    a("s_sub_u32 s52, s2, 32")
    a("s_cmp_ge_u32 s52, 64")
    a("s_cbranch_scc1 L_l_nop0b")
    a("s_waitcnt vmcnt(%d)" % (3 * c.opt.get("ringsplit", 6) + (2 if c.opt.get("touchL") else 0)))
    p0_dot(c, None)
    a("""
    v_and_b32 v20, 7, v1
    v_lshlrev_b32 v20, 3, v20
    v_lshrrev_b32 v21, 5, v1
    v_lshl_add_u32 v20, v21, 2, v20
    v_lshrrev_b32 v21, 4, v1
    v_and_b32 v21, 1, v21
    v_lshl_add_u32 v20, v21, 1, v20
    v_lshlrev_b32 v20, 3, v20
    s_and_b32 s52, s2, 1
    s_lshl_b32 s52, s52, 2
    s_add_u32 s52, s52, s44
    s_lshl_b32 s52, s52, 14
    s_lshr_b32 s53, s2, 1
    s_sub_u32 s53, s53, 16
    s_lshl_b32 s53, s53, 9
    s_add_u32 s52, s52, s53
    s_add_u32 s52, s52, %d
    v_mov_b32 v6, 132
    s_mov_b32 s72, 0
    """ % WS_GRB)
    a.label("L_l_nonb")
    a("""
    v_readfirstlane_b32 s49, v5
    s_add_u32 s72, s72, 1
    s_cmp_gt_u32 s72, 0x100000
    s_cbranch_scc1 L_l_nonb_out
    s_cmp_lg_u32 s49, 0
    s_cbranch_scc1 L_l_nonb_out
    global_load_dword v5, v6, s[24:25] sc1
    s_waitcnt vmcnt(0)
    s_branch L_l_nonb
    """)
    a.label("L_l_nonb_out")
    a("""
    v_mov_b32 v76, v72
    v_mov_b32 v77, v5
    v_mov_b32 v78, v73
    v_mov_b32 v79, v5
    s_mov_b32 exec_lo, 0x00ff00ff
    s_mov_b32 exec_hi, 0x00ff00ff
    """)
    a("buffer_store_dwordx4 v[76:79], v20, %s, s52 offen sc1" % bsrd(SRD_WS))
    a("s_mov_b64 exec, -1")
    a("s_nop 1")
    a.label("L_l_nop0b")
    if c.opt.get("stage", 1):
        l_slot_setup(c)
        srd(a, SRD_X, S_WG, 512 * 3584)
        a("s_cmp_ge_u32 s44, 2")
        a("s_cselect_b32 s36, s14, s12")
        a("s_cselect_b32 s37, s15, s13")
        a("s_and_b32 s37, s37, 0xffff")
        a("v_lshlrev_b32 v200, 4, v1")
        a("v_add_u32 v200, s64, v200")
        a("v_add_u32 v201, 0x10000, v200")
        a("v_add_u32 v202, 0x20000, v200")
        c.bar("L", "T0")
        if c.opt.get("wstage"):
            a("v_lshlrev_b32 v203, 4, v1")
            a("v_add_u32 v203, s62, v203")
            def ws_load(st):
                a("s_mov_b32 s63, %d" % (st * 98304))
                for m in range(3):
                    a("buffer_load_dwordx4 %s, v10, %s, s63 offen offset:%d" % (v4(STG + 12 * (st - 6) + 4 * m), bsrd(SRD_A), m * 1024))
                    vm.issue(("WS", st))
            c.ws_load = ws_load
            c.ws_next = 6 + c.opt.get("nws0", 6)
            for st in range(6, c.ws_next): ws_load(st)
            l_wait(c, lambda t: t[0] == "W1")
            c.ps_next = 0; c.ps_untracked = []
            a("s_branch L_l_ps_done2")
        if c.opt.get("tw0"):
            l_touch_w(c)
            l_touch_block(c, only_ws=True)
        a("s_cmp_ge_u32 s46, 28")
        a("s_cbranch_scc1 L_l_ps_idle")
        NP1 = 0 if c.opt.get("wstage") else c.opt.get("np1", 20)
        c.ps_next = NP1; c.ps_untracked = []
        for L in range(NP1): l_ps_load(c, L)
        a("s_waitcnt vmcnt(%d)" % (NP1 + (2 if c.opt.get("tw0") else 0) + (2 if c.opt.get("touchL") else 0)))
        a("s_branch L_l_ps_done")
        a.label("L_l_ps_idle")
        a("s_waitcnt vmcnt(%d)" % ((2 if c.opt.get("tw0") else 0) + (2 if c.opt.get("touchL") else 0)))
        a.label("L_l_ps_done")
        if c.opt.get("wstage"):
            a.label("L_l_ps_done2")
            c.ps_next = 0
        else:
            vm.q = []
    elif c.opt.get("wstage"):
        c.bar("L", "T0")
        for s_ in range(c.opt.get("ringsplit", 6), 6): c.l_stage(s_)
        a("v_lshlrev_b32 v203, 4, v1")
        a("v_add_u32 v203, s62, v203")
        def ws_load(st):
            a("s_mov_b32 s63, %d" % (st * 98304))
            for m in range(3):
                a("buffer_load_dwordx4 %s, v10, %s, s63 offen offset:%d" % (v4(STG + 12 * (st - 6) + 4 * m), bsrd(SRD_A), m * 1024))
                vm.issue(("WS", st))
        c.ws_load = ws_load
        c.ws_next = 6 + c.opt.get("nws0", 6)
        for st in range(6, c.ws_next): ws_load(st)
        l_wait(c, lambda t: t[0] == "W1" and t[1] <= 2)
    elif c.opt.get("tw0"):
        c.bar("L", "T0")
        l_touch_w(c)
        l_touch_block(c, only_ws=True)
        a(vm.wait(lambda t: t[0] == "W1"))
    elif c.opt.get("ringsplit", 6) < 6:
        c.bar("L", "T0")
        for s in range(c.opt["ringsplit"], 6): c.l_stage(s)
        l_wait(c, lambda t: t[0] == "W1" and t[1] <= 2)
    else:
        a(vm.wait(lambda t: t[0] == "W1"))
    c.bar("L", "PRE")
    a("v_mov_b32 v2, %d" % (LDS_MODE + 4))
    a("ds_read_b32 v3, v2")
    a("s_waitcnt lgkmcnt(0)")
    a("v_readfirstlane_b32 s49, v3")
    a("s_mov_b64 exec, 1")
    a("s_cmp_lg_u32 s44, 1")
    a("s_cbranch_scc1 L_l_y3")
    a.label("L_l_y1")
    a("""
    s_lshl_b32 s52, s45, 12
    s_lshl_b32 s53, s46, 2
    s_add_u32 s52, s52, s53
    s_add_u32 s52, s52, %d
    s_add_u32 s53, s49, s50
    s_add_u32 s53, s53, 1
    v_mov_b32 v2, 0
    v_mov_b32 v3, s53
    """ % (WS_FLAG + FHI))
    a("buffer_store_dword v3, v2, %s, s52 offen sc1" % bsrd(SRD_WS))
    a.label("L_l_y3")
    a("s_mov_b64 exec, -1")
    vm.issue(("Y",))
    if c.opt.get("pstage"):
        assert c.opt.get("wstage") and c.opt.get("nws0") == 10 and not c.opt.get("stage", 1)
        l_slot_setup(c)
        srd(a, SRD_X, S_WG, 512 * 3584)
        a("s_cmp_ge_u32 s44, 2")
        a("s_cselect_b32 s36, s14, s12")
        a("s_cselect_b32 s37, s15, s13")
        a("s_and_b32 s37, s37, 0xffff")
        a("v_lshlrev_b32 v200, 4, v1")
        a("v_add_u32 v200, s64, v200")
        a("v_add_u32 v201, 0x10000, v200")
        a("v_add_u32 v202, 0x20000, v200")
        c.ps_next = 0; c.ps_untracked = []
    for i in range(8):
        if c.opt.get("wstage"):
            l_wait(c, lambda t: t[0] == "W1" and t[1] <= 2 * i + 2)
            a("s_waitcnt lgkmcnt(0)")
        else:
            l_wait(c, lambda t: t[0] == "W1" and t[1] <= 2 * i + 2)
        c.bar("L", "G%d" % i)
        for s in (2 * i + 5, 2 * i + 6):
            if 6 <= s < 16:
                if c.opt.get("wstage"):
                    l_wait(c, lambda t: t[0] == "WS" and t[1] <= s)
                    for m in range(3):
                        a("ds_write_b128 v203, %s offset:%d" % (v4(STG + 12 * (s - 6) + 4 * m), (s % 6) * 12288 + m * 1024))
                else:
                    c.l_stage(s)
        if c.opt.get("wstage"):
            for _ in range(2):
                if c.ws_next < 16: c.ws_load(c.ws_next); c.ws_next += 1
        if i == 5: l_vec_issue(c)
        if i == c.opt.get('touch6', -1): l_touch_w(c)
        if i == c.opt.get('pt6', -1): l_touch_block(c, only_ws=True)
        if i == 6 and not c.opt.get('stage', 1) and not c.opt.get('pstage'): l_slot_setup(c)
        if c.opt.get('stage', 1) or c.opt.get('pstage'):
            plan = c.opt.get("ps2", {1: 3, 2: 6, 3: 6, 4: 6, 5: 6, 6: 3} if c.opt.get("wstage") else {4: 3, 5: 4, 6: 5})
            if c.opt.get("pstage"): plan = c.opt["pstage"]
            n = plan.get(i, 0)
            if n:
                a("s_cmp_ge_u32 s46, 28")
                a("s_cbranch_scc1 L_l_ps2_idle%d" % i)
                for L in range(c.ps_next, c.ps_next + n):
                    l_ps_load(c, L); vm.issue(("PS", L))
                a.label("L_l_ps2_idle%d" % i)
                c.ps_next += n
                c.ps_untracked.append((i, n))
        if i == 7: l_vec_check(c)
    c.bar("L", "GEND")

def phys(L): return (L + SLOT_OFF) % NSLOT
def l_slot_setup(c):
    a = c.a
    a("""
    v_lshrrev_b32 v14, 3, v1
    v_lshlrev_b32 v14, 10, v14
    v_lshrrev_b32 v15, 4, v1
    v_and_b32 v15, 1, v15
    v_lshlrev_b32 v15, 2, v15
    v_and_b32 v16, 7, v1
    v_xor_b32 v15, v15, v16
    v_lshl_add_u32 v12, v15, 4, v14
    s_lshl_b32 s53, s48, 7
    v_add_u32 v12, s53, v12
    s_lshl_b32 s53, s44, 13
    v_add_u32 v13, s53, v12
    """)
    a("""
    s_and_b32 s53, s44, 1
    s_lshl_b32 s53, s53, 3
    v_lshrrev_b32 v14, 3, v1
    v_add_u32 v14, s53, v14
    v_mul_u32_u24 v14, 3584, v14
    v_lshrrev_b32 v15, 4, v1
    v_and_b32 v15, 1, v15
    v_lshlrev_b32 v15, 1, v15
    s_lshr_b32 s53, s44, 1
    s_lshl_b32 s53, s53, 2
    v_add_u32 v15, s53, v15
    v_xor_b32 v15, v15, v16
    v_lshl_add_u32 v11, v15, 4, v14
    s_lshl_b32 s64, s44, 10
    """)
    a("""
    s_cmp_ge_u32 s46, 14
    s_cselect_b32 s66, 1, 0
    s_mul_i32 s53, s66, 14
    s_sub_u32 s67, s46, s53
    s_lshl_b32 s65, s67, 8
    """)
    if c.opt.get("pswap", 1):
        a("""
        s_and_b32 s53, s67, 1
        s_lshl_b32 s53, s53, 7
        s_add_u32 s70, s65, 128
        s_sub_u32 s70, s70, s53
        s_add_u32 s65, s65, s53
        """)
    else:
        a("s_add_u32 s70, s65, 128")

def p4_tile2(c, k, fs):
    return (2 * k) ^ (4 * (fs & 1) if c.opt.get("pswap", 1) else 0)

def l_dma_slot(c, L, throttle=None):
    a = c.a; vm = c.vmL
    if L < 64:
        p, s = divmod(L, 32)
        a("s_add_u32 s63, s%d, %d" % (70 if p else 65, s * 57344))
        a("s_add_u32 m0, s64, %d" % (phys(L) * 4096))
        a("s_nop 0")
        a("buffer_load_dwordx4 v11, %s, s63 offen lds" % bsrd(SRD_X if c.opt.get("stage", 1) else SRD_A))
    else:
        k, fs = divmod(L - 64, 14)
        a("s_mov_b32 s63, %d" % ((128 * fs + 16 * p4_tile2(c, k, fs)) * 1024))
        a("s_add_u32 m0, s64, %d" % (phys(L) * 4096))
        a("s_nop 0")
        a("buffer_load_dwordx4 v13, %s, s63 offen lds" % bsrd(SRD_B))
    vm.issue(("S", L))
    if throttle is not None and len(vm.q) > throttle:
        a("s_waitcnt vmcnt(%d)" % throttle)
        vm.q = vm.q[-throttle:] if throttle else []

def l_p2(c, mode):
    a = c.a; vm = c.vmL
    TH = c.opt.get("throttle", 4)
    vm.q = []
    srd(a, SRD_B, S_WO, 512 * 1024)
    for q in range(16):
        a("s_mov_b32 s63, %d" % (q * 32768))
        a("s_add_u32 m0, s64, %d" % (q * 4096))
        a("s_nop 0")
        a("buffer_load_dwordx4 v13, %s, s63 offen lds" % bsrd(SRD_B))
        vm.issue(("WO", q))
    l_vec_finish(c)
    srd(a, SRD_A, S_WG, 512 * 3584)
    a("s_cmp_ge_u32 s44, 2")
    a("s_cselect_b32 s28, s14, s12")
    a("s_cselect_b32 s29, s15, s13")
    a("s_and_b32 s29, s29, 0xffff")
    a("s_cmp_ge_u32 s46, 28")
    a("s_cbranch_scc1 L_l_p2idle_" + mode)
    if not (c.opt.get("trig", 1) and not c.opt.get("stage", 1)):
        npre = c.opt.get("npre", 19)
        q0 = list(vm.q)
        for L in range(0, npre): l_dma_slot(c, L, None)
        a("s_waitcnt vmcnt(%d)" % npre)
        a("s_branch L_l_p2act_" + mode)
        a.label("L_l_p2idle_" + mode)
        a("s_waitcnt vmcnt(0)")
        a.label("L_l_p2act_" + mode)
        vm.q = [("S", L) for L in range(npre)]
        c.bar("L", "P2A")
        a("s_cmp_ge_u32 s46, 28")
        a("s_cbranch_scc1 L_l_p2idle2_" + mode)
        for L in range(npre, 19): l_dma_slot(c, L, None)
        a.label("L_l_p2idle2_" + mode)
    else:
        n1, n2, n3 = c.opt.get("tb", (6, 6, 7))
        c.l_next = 0
        if c.opt.get("pstage"):
            a("s_waitcnt vmcnt(16)")
            c.l_next = c.ps_next
            assert c.l_next <= 19
            for L in range(c.l_next): l_stage_write(c, L, L)
            a("s_waitcnt lgkmcnt(0)")
        assert c.l_next + n1 + n2 + n3 <= 19
        def batch(n, tag):
            lab = "L_l_b%s_%s" % (tag, mode)
            a("s_cmp_ge_u32 s46, 28")
            a("s_cbranch_scc1 " + lab)
            for L in range(c.l_next, c.l_next + n): l_dma_slot(c, L, None)
            a.label(lab)
            c.l_next += n
        c.l_batch = batch
        a.label("L_l_p2idle_" + mode)
        c.bar("L", "T1")
        batch(n1, "1")
        c.bar("L", "T2")
        batch(n2, "2")
        a("s_cmp_ge_u32 s46, 28")
        a("s_cbranch_scc1 L_l_wo0_" + mode)
        a("s_waitcnt vmcnt(%d)" % (n1 + n2))
        a("s_branch L_l_wo1_" + mode)
        a.label("L_l_wo0_" + mode)
        a("s_waitcnt vmcnt(0)")
        a.label("L_l_wo1_" + mode)
        vm.q = [("S", L) for L in range(c.l_next - n1 - n2, c.l_next)]
        c.bar("L", "P2A")
        c.bar("L", "T3")
        batch(n3, "3")
    save = list(vm.q)
    c.bar("L", "P2C")
    srd(a, SRD_B, S_WD, 1792 * 1024)

def l_p3p4(c, mode):
    a = c.a; vm = c.vmL
    TH = c.opt.get("throttle", 4)
    a("s_cmp_ge_u32 s46, 28")
    a("s_cbranch_scc1 L_l_idle_" + mode)
    if (c.opt.get("trig", 1) and not c.opt.get("stage", 1)):
        m1, m2, m3 = c.opt.get("tc", (5, 5, 6))
        nx = c.l_next
        for (n, bn) in ((m1, "T4"), (m2, "T5"), (m3, "T6")):
            c.bar("L", bn)
            for L in range(nx, nx + n): l_dma_slot(c, L, None)
            nx += n
        for L in range(nx, 35): l_dma_slot(c, L, None)
    else:
        for L in range(19, 35): l_dma_slot(c, L, TH)
    a(vm.drain())
    c.bar("L", "P3A")
    issued = 35
    if not c.opt.get("late35"):
        for L in range(35, 39): l_dma_slot(c, L)
        issued = 39
    WT = c.opt.get("wt")
    wt = 103
    if WT:
        c.opt["s0"] = 103
    for (g, free_upto, vis) in c.p3_bars:
        w = vm.wait(lambda t: t[0] == "S" and t[1] <= vis)
        if w: a(w)
        c.bar("L", "P3_%d" % g)
        while issued <= min(free_upto + NSLOT, 119):
            l_dma_slot(c, issued); issued += 1
        if WT:
            for n in range(WT.get(g, 0)):
                l_wt_load(c, wt); wt += 1
    if WT: assert wt == 120, wt
    c.l_issued_active = issued
    w = vm.wait(lambda t: t[0] == "S" and t[1] <= c.p4a_vis)
    if w: a(w)
    a("s_branch L_l_p4_" + mode)
    a.label("L_l_idle_" + mode)
    qa = list(vm.q)
    vm.q = []
    a("s_waitcnt vmcnt(0)")
    nb = len(c.bars["L"])
    if (c.opt.get("trig", 1) and not c.opt.get("stage", 1)): a("s_barrier\ns_barrier\ns_barrier")
    a("s_barrier")
    l_touch_d3(c)
    for L in range(64, 64 + NSLOT): l_dma_slot(c, L, 8)
    if WT:
        for L in range(103, 120): l_wt_load(c, L)
    l_wbl2(c)
    a(vm.drain())
    a.label("L_l_p4_" + mode)
    c.bar("L", "P4A")
    a("s_cmp_ge_u32 s46, 28")
    a("s_cbranch_scc1 L_l_p4b_" + mode)
    vm.q = [x for x in qa if (x[0] == "S" and x[1] > c.p4a_vis) or x[0] == "WT"]
    for L in range(issued, 103): l_dma_slot(c, L)
    a.label("L_l_p4b_" + mode)
    issued = 103
    if WT:
        a("v_lshlrev_b32 v200, 4, v1")
        a("v_add_u32 v200, s64, v200")
        a("v_add_u32 v201, 0x10000, v200")
        a("v_add_u32 v202, 0x20000, v200")
    for (j, free_upto, vis) in c.p4_bars:
        if c.opt.get("lpoll"):
            if j == c.opt.get("g2", 16): l_f3_poll(c, 2)
            if j == c.opt.get("g3", 24): l_f3_poll(c, 3)
        w = vm.wait(lambda t: t[0] == "S" and t[1] <= vis)
        if w: a(w)
        if WT: a("s_waitcnt lgkmcnt(0)")
        c.bar("L", "P4_%d" % j)
        while issued <= min(free_upto + NSLOT, 119):
            if WT:
                w = vm.wait(lambda t: t[0] == "WT" and t[1] <= issued)
                if w: a(w)
                l_stage_write(c, issued, issued - 103)
            else:
                l_dma_slot(c, issued)
            issued += 1
    c.bar("L", "P4X")
    c.bar("L", "P4Y")

def l_p2s(c):
    a = c.a; vm = c.vmL
    vm.q = []
    srd(a, SRD_B, S_WO, 512 * 1024)
    for q in range(16):
        a("s_mov_b32 s63, %d" % (q * 32768))
        a("s_add_u32 m0, s64, %d" % (q * 4096))
        a("s_nop 0")
        a("buffer_load_dwordx4 v13, %s, s63 offen lds" % bsrd(SRD_B))
    l_vec_finish(c)
    a("s_cmp_ge_u32 s46, 28")
    a("s_cbranch_scc1 L_l_s2_idle")
    a("s_waitcnt vmcnt(16)")
    for L in range(19): l_stage_write(c, L, L)
    a.label("L_l_s2_idle")
    a("s_waitcnt vmcnt(0) lgkmcnt(0)")
    c.bar("L", "P2A")
    c.bar("L", "P2C")
    srd(a, SRD_B, S_WD, 1792 * 1024)

def l_wt_load(c, L):
    a = c.a; vm = c.vmL; S0 = c.opt.get('s0', 99)
    k, fs = divmod(L - 64, 14)
    a("s_mov_b32 s63, %d" % ((128 * fs + 16 * p4_tile2(c, k, fs)) * 1024))
    a("buffer_load_dwordx4 %s, v13, %s, s63 offen" % (v4(STG + 4 * (L - S0)), bsrd(SRD_B)))
    vm.issue(("WT", L))

def l_wbl2(c):
    if not c.opt.get("wbl2"): return
    a = c.a
    lab = a.newlabel("L_wb")
    a("s_cmp_lg_u32 s46, 28")
    a("s_cbranch_scc1 " + lab)
    a("s_cmp_lg_u32 s44, 0")
    a("s_cbranch_scc1 " + lab)
    a("buffer_wbl2 sc1")
    a.label(lab)

def l_touch_d3(c):
    a = c.a
    if c.opt.get("d3"):
        a("""
        s_sub_u32 s52, s46, 28
        s_lshl_b32 s52, s52, 2
        s_add_u32 s52, s52, s44
        s_mul_i32 s52, s52, 112
        v_add_u32 v52, s52, v1
        v_lshlrev_b32 v52, 10, v52
        v_add_u32 v52, 384, v52
        v_add_u32 v54, 0x10000, v52
        """)
        a("buffer_load_dword v53, v52, %s, 0 offen" % bsrd(SRD_B))
        set_exec(a, 48)
        a("buffer_load_dword v53, v54, %s, 0 offen" % bsrd(SRD_B))
        a("s_mov_b64 exec, -1")

def l_f3_poll(c, k):
    a = c.a
    lab = "L_l_f3_%d" % k
    a("s_cmp_lg_u32 s44, 0")
    a("s_cbranch_scc1 %s_skip" % lab)
    a("""
    s_lshr_b32 s52, s47, 1
    s_mul_i32 s52, s52, 14
    s_lshl_b32 s52, s52, 4
    s_and_b32 s53, s47, 1
    s_lshl_b32 s53, s53, 3
    s_add_u32 s52, s52, s53
    s_lshl_b32 s53, s45, 12
    s_add_u32 s52, s52, s53
    s_add_u32 s52, s52, %d
    v_cmp_lt_u32 vcc, 13, v1
    v_subrev_u32 v2, 14, v1
    s_nop 0
    v_cndmask_b32 v2, v1, v2, vcc
    v_lshlrev_b32 v2, 4, v2
    v_cndmask_b32 v3, 0, 1, vcc
    v_lshl_add_u32 v2, v3, 2, v2
    v_add_u32 v253, s52, v2
    """ % (WS_FLAG + F3 + 512 * k))
    poll(c, None, 28, S_NONCE, None, lab, vtmp=252)
    a.label(lab + "_skip")

def l_p3p4s(c):
    a = c.a; vm = c.vmL; S0 = c.opt.get('s0', 99)
    a("s_cmp_ge_u32 s46, 28")
    a("s_cbranch_scc1 L_l_s_idle")
    NST = 30 if c.opt.get("wstage") else 32
    for L in range(19, NST): l_stage_write(c, L, L)
    vm.q = []
    for L in range(NST, 35): l_dma_slot(c, L)
    a(vm.drain())
    a("s_waitcnt lgkmcnt(0)")
    c.bar("L", "P3A")
    for L in range(35, 39): l_dma_slot(c, L)
    issued = 39
    wt = S0
    wtplan = c.opt.get("wtplan", {136: 3, 152: 5, 168: 13}) if S0 == 99 else c.opt.get("wtplan", {})
    for (g, free_upto, vis) in c.p3_bars:
        w = vm.wait(lambda t: t[0] == "S" and t[1] <= vis)
        if w: a(w)
        c.bar("L", "P3_%d" % g)
        while issued <= min(free_upto + NSLOT, S0 - 1, 98):
            l_dma_slot(c, issued); issued += 1
        for n in range(wtplan.get(g, 0)):
            l_wt_load(c, wt); wt += 1
    assert issued == 99 and (wt == 120 or S0 == 120), (issued, wt)
    w = vm.wait(lambda t: t[0] == "S" and t[1] <= c.p4a_vis)
    if w: a(w)
    qa = list(vm.q)
    a("s_branch L_l_s_p4")
    a.label("L_l_s_idle")
    vm.q = []
    a("s_barrier")
    l_touch_d3(c)
    for L in range(64, 99): l_dma_slot(c, L, 8)
    for L in range(S0, 120): l_wt_load(c, L)
    l_wbl2(c)
    a(vm.drain())
    a.label("L_l_s_p4")
    vm.q = qa
    c.bar("L", "P4A")
    w = vm.wait(lambda t: t[0] == "WT")
    if w: a(w)
    def fill(L):
        if L >= S0: l_stage_write(c, L, L - S0)
        else: l_dma_slot(c, L)
    nxt = 99
    while nxt <= 102: fill(nxt); nxt += 1
    for (j, free_upto, vis) in c.p4_bars:
        if j == c.opt.get("g2", 16): l_f3_poll(c, 2)
        if j == c.opt.get("g3", 24): l_f3_poll(c, 3)
        w = vm.wait(lambda t: t[0] == "S" and t[1] <= vis)
        if w: a(w)
        a("s_waitcnt lgkmcnt(0)")
        c.bar("L", "P4_%d" % j)
        while nxt <= min(free_upto + NSLOT, 119):
            fill(nxt); nxt += 1
    c.bar("L", "P4X")
    c.bar("L", "P4Y")

def finish(c):
    a = c.a
    a.label("L_fin")
    if c.opt["stamps"]:
        a("""
        s_lshl_b32 s53, s2, 3
        s_add_u32 s53, s53, s99
        s_lshl_b32 s53, s53, 8
        s_add_u32 s53, s53, %d
        v_lshlrev_b32 v254, 2, v1
        """ % WS_TS)
        a("buffer_store_dword v255, v254, %s, s53 offen" % bsrd(SRD_WS))
        a("s_mov_b64 exec, -1")
    if c.opt.get("dbgstamps"):
        sel = c.opt["dbgstamps"]
        a("s_cmp_lg_u32 s99, 0")
        a("s_cbranch_scc1 L_nodbg")
        a("s_load_dwordx2 s[24:25], s[0:1], 80")
        a("s_memrealtime s[96:97]")
        a("s_waitcnt lgkmcnt(0)")
        a("v_readlane_b32 s52, v255, 0")
        a("s_mov_b64 exec, 1")
        a("s_not_b32 s53, s52")
        a("v_mov_b32 v2, 56")
        a("v_mov_b32 v3, s96")
        a("global_atomic_umax v2, v3, s[24:25]")
        a("v_mov_b32 v2, 60")
        a("v_mov_b32 v3, s53")
        a("global_atomic_umax v2, v3, s[24:25]")
        a("s_cmp_lg_u32 s2, %d" % c.opt.get("dbgwg", 100))
        a("s_cbranch_scc1 L_nodbg2")
        for n, i in enumerate(sel):
            a("v_readlane_b32 s54, v255, %d" % i)
            a("s_nop 1")
            a("s_sub_u32 s54, s54, s52")
            a("v_mov_b32 v2, %d" % (4 * n))
            a("v_mov_b32 v3, s54")
            a("global_store_dword v2, v3, s[24:25]")
        a.label("L_nodbg2")
        a("s_mov_b64 exec, -1")
        a.label("L_nodbg")
    if c.opt["stamps"] or c.opt.get("endwait"): a("s_waitcnt vmcnt(0)")
    a.label("L_end")
    a("s_endpgm")
    a.label("L_code_end")

HEADER = """\
; Kernarg (ptrs): 0 A_x, 8 A_wqkv, 16 A_wo, 24 B_x (unused), 32 w_gate, 40 w_up, 48 w_down, 56 c, 64 w_mod, 72 out, 80 debug, 88 ws.
;   P0  silu(c) @ w_mod, split over workgroups 0..95, published as {value, nonce} granules (nonce: debug[33], written by workgroup 0)
; Hand-offs inside a group use per-wave flags / granules tagged with the nonce. If all 32 workgroups of a group report the same
; XCC id the hand-off data stays in that XCD's L2 (plain stores); otherwise the device-scope copy of the code (L_c_global) is used.
"""

def gen(**kw):
    c = Ctx(**kw); a = c.a
    plan_p3(c); plan_p4(c)
    a.raw("; @launch grid=(256,1,1) block=(512,1,1) lds=%d" % LDS_TOTAL)
    a.raw(HEADER.rstrip())
    a.raw('.amdgcn_target "amdgcn-amd-amdhsa--gfx950"')
    a.raw(kernel_header(NAME).rstrip())
    entry(c)
    if c.opt["stamps"]: a("s_mov_b32 s99, s44")
    a("s_cmp_ge_u32 s2, 32")
    a("s_cbranch_scc1 L_c_nos0")
    c.bar("C", "S0")
    a.label("L_c_nos0")
    c_x_loads(c)
    if c.opt.get("touch4", 0): c.bar("C", "S1")
    a("s_cmp_ge_u32 s2, 96")
    a("s_cbranch_scc1 L_c2")
    a("s_barrier")
    a("s_branch L_c2")
    a.label("L_loader")
    if c.opt["stamps"]: a("s_mov_b32 s99, s44\ns_nop 0")
    l_start(c)
    c.stamp("L", "lstart")
    a("s_branch L_loader2")
    a.label("L_c2")
    if c.opt.get("prio"): a("s_setprio %d" % c.opt["prio"])
    c_ln1(c)
    c.stamp("C", "ln1")
    c_h0_modulate(c)
    c.stamp("C", "pre")
    c_qkv(c)
    c.stamp("C", "qkv")
    if not c.opt.get("hoist", 1):
        c_attn_consts(c); c_xres_loads(c); c_p2_pre(c); c_p2_setup(c)
    a("s_waitcnt lgkmcnt(0)")
    a("v_readfirstlane_b32 s51, v159")
    a("s_nop 3")
    a("s_cmp_eq_u32 s51, 0")
    a("s_cbranch_scc1 L_c_global")
    nb0 = len(c.bars["C"]); ns0 = c.nstamp["C"]
    seqs = []
    for mode in ("L", "G"):
        if mode == "G":
            g0 = len(a.lines)
            a.label("L_c_global")
            seqs.append(c.bars["C"][nb0:]); del c.bars["C"][nb0:]; c.nstamp["C"] = ns0
        c_attention(c, mode)
        c.stamp("C", "attn")
        c_p2(c, mode)
        a("s_cmp_ge_u32 s46, 28")
        a("s_cbranch_scc1 L_c_idle_" + mode)
        nb1 = len(c.bars["C"]); ns1 = c.nstamp["C"]
        c_p3(c, mode)
        a("s_branch L_c_p4_" + mode)
        a.label("L_c_idle_" + mode)
        a("s_barrier")
        if not c.opt.get("minstamps"): c.nstamp["C"] -= 1
        c_p4_pre(c, mode, "i")

        a.label("L_c_p4_" + mode)
        c.stamp("C", "p3end")
        c_p4(c, mode)
        c.stamp("C", "end")
        a("s_branch L_fin")
    assert seqs[0] == c.bars["C"][nb0:]
    gcode = []
    if c.opt.get("gtail", 1):
        gcode = a.lines[g0:]; del a.lines[g0:]
    a.label("L_loader2")
    l_p1(c)
    c.stamp("L", "gend")
    if c.opt.get("stage", 1):
        l_p2s(c)
        c.stamp("L", "p2c")
        l_p3p4s(c)
    else:
        l_p2(c, "X")
        c.stamp("L", "p2c")
        l_p3p4(c, "X")
    finish(c)
    a.lines += gcode
    assert c.bars["C"] == c.bars["L"], (c.bars)
    a.raw(kernel_desc(NAME, vgpr=256, sgpr=102, accum=256))
    return a.text()

STAMPS_C = ["entry", "xdot", "lnbar", "ln1", "h0", "pre", "qkv", "attn", "f1", "p2mm", "f2a_st", "f2a", "f2b_st", "f2b", "pA", "pB", "pC", "p3mm", "f3", "p3end", "p4mm", "end"]
import os
if os.environ.get("P3STAMPS"):
    STAMPS_C = ["entry", "f2b"] + [x + str(g) for g in (72, 88, 104, 120, 136, 152, 168, 200, 216, 232, 248) for x in ("b", "a")] + ["p3mm", "f3", "p3end", "p4mm", "end"]
if os.environ.get("P4STAMPS"):
    i = STAMPS_C.index("p4mm"); STAMPS_C[i:i] = ["s0", "s8", "s16", "b16", "s24", "s32", "b32", "s40", "s48", "b48"]
if os.environ.get("GSTAMPS"):
    i = STAMPS_C.index("qkv"); STAMPS_C[i:i] = [x + str(k) for k in range(0, 16, 2) for x in ("gb", "ga")]
    STAMPS_C = STAMPS_C[:32]
if os.environ.get("ASTAMPS"):
    i = STAMPS_C.index("attn"); STAMPS_C[i:i] = ["a_cvt", "a_sel", "a_soft", "a_pv", "a_drain"]
STAMPS_L = ["entry", "c", "dot", "p0bar", "modst", "lstart", "gend", "p2c"]

if __name__ == "__main__":
    out = sys.argv[1]
    kw = {}
    for x in sys.argv[2:]:
        k, v = x.split("=")
        kw[k] = eval(v)
    open(out, "w").write(gen(**kw))
```
